```python
import torch

def _softmax(x, axis=-1):
    return torch.softmax(x, dim=axis)
def _gelu(x):
    return torch.nn.functional.gelu(x, approximate="tanh")
def _silu(x):
    return torch.nn.functional.silu(x)
def _sigmoid(x):
    return torch.sigmoid(x)
def _layernorm(x, axis=-1, eps=1e-5):
    m = x.mean(dim=axis, keepdim=True)
    v = x.var(dim=axis, keepdim=True, unbiased=False)
    return (x - m) / torch.sqrt(v + eps)
def _scatter_add(tgt, idx, src, axis=0):
    return tgt.clone().index_add_(axis, idx, src)
def _segment_sum(src, seg, n):
    out = torch.zeros((n,) + src.shape[1:], dtype=src.dtype)
    return out.index_add_(0, seg, src)
def _pad(x, pw):
    flat = tuple(v for pair in reversed(pw) for v in pair)
    return torch.nn.functional.pad(x, flat)

kernel_name = 'concat_heads__gqa_block_cached__mha_block_cached__near_ridge'

def setup_inputs():

    _w = (lambda a: (lambda t: t.to(torch.bfloat16) if t.is_floating_point() else t)(torch.as_tensor(a)))
    def _A_setup():
        B, Sq, D = 8, 128, 640
        Hq, Hkv, Sk, Dh = 32, 32, 512, 128
        assert Hq % Hkv == 0, (Hq, Hkv)
        return {
            "x": _w((lambda *s: torch.randn(*s, dtype=torch.bfloat16) * 0.8)(B, Sq, D)),
            "k_cache": _w((lambda *s: torch.randn(*s, dtype=torch.bfloat16) * 0.8)(B, Hkv, Sk, Dh)),
            "v_cache": _w((lambda *s: torch.randn(*s, dtype=torch.bfloat16) * 0.05)(B, Hkv, Sk, Dh)),
            "wq": _w((lambda *s: torch.randn(*s, dtype=torch.bfloat16) * 0.8)(D, Hq * Dh) * (D ** -0.5)),
            "wo": _w((lambda *s: torch.randn(*s, dtype=torch.bfloat16) * 0.05)(Hq * Dh, D) * ((Hq * Dh) ** -0.5)),
        }
    _A_in = _A_setup()

    def _B_setup():
        B, Sq, D = 8, 128, 640
        H, Sk, Dh = 32, 512, 128
        return {
            "x": _w((lambda *s: torch.randn(*s, dtype=torch.bfloat16) * 0.8)(B, Sq, D)),
            "k_cache": _w((lambda *s: torch.randn(*s, dtype=torch.bfloat16) * 0.8)(B, H, Sk, Dh)),
            "v_cache": _w((lambda *s: torch.randn(*s, dtype=torch.bfloat16) * 0.05)(B, H, Sk, Dh)),
            "wq": _w((lambda *s: torch.randn(*s, dtype=torch.bfloat16) * 0.8)(D, H * Dh) * (D ** -0.5)),
            "wo": _w((lambda *s: torch.randn(*s, dtype=torch.bfloat16) * 0.05)(H * Dh, D) * ((H * Dh) ** -0.5)),
        }
    _B_in = _B_setup()

    return {
        "A_x": _A_in["x"],
        "A_k_cache": _A_in["k_cache"],
        "A_v_cache": _A_in["v_cache"],
        "A_wq": _A_in["wq"],
        "A_wo": _A_in["wo"],
        "B_x": _B_in["x"],
        "B_k_cache": _B_in["k_cache"],
        "B_v_cache": _B_in["v_cache"],
        "B_wq": _B_in["wq"],
        "B_wo": _B_in["wo"],
    }

def reference(A_x, A_k_cache, A_v_cache, A_wq, A_wo, B_x, B_k_cache, B_v_cache, B_wq, B_wo):
    def _A_ref(x, k_cache, v_cache, wq, wo):
        B, Sq, D = x.shape
        Hq, Dh = 32, 128
        Hkv = k_cache.shape[1]
        rep = Hq // Hkv
        q = (lambda x, *d: x.permute(*d))((x @ wq).reshape(B, Sq, Hq, Dh), 0, 2, 1, 3)
        k = (lambda x, n, axis: torch.repeat_interleave(x, n, dim=axis))(k_cache, rep, axis=1)
        v = (lambda x, n, axis: torch.repeat_interleave(x, n, dim=axis))(v_cache, rep, axis=1)
        scores = torch.einsum("bhqd,bhkd->bhqk", q, k) * (Dh ** -0.5)
        p = _softmax(scores, axis=-1)
        o = torch.einsum("bhqk,bhkd->bhqd", p, v)
        return (lambda x, *d: x.permute(*d))(o, 0, 2, 1, 3).reshape(B, Sq, Hq * Dh) @ wo

    def _B_ref(x, k_cache, v_cache, wq, wo):
        B, Sq, D = x.shape
        H, Dh = 32, 128
        q = (lambda x, *d: x.permute(*d))((x @ wq).reshape(B, Sq, H, Dh), 0, 2, 1, 3)
        scores = torch.einsum("bhqd,bhkd->bhqk", q, k_cache) * (Dh ** -0.5)
        p = _softmax(scores, axis=-1)
        o = torch.einsum("bhqk,bhkd->bhqd", p, v_cache)
        return (lambda x, *d: x.permute(*d))(o, 0, 2, 1, 3).reshape(B, Sq, H * Dh) @ wo

    a = _A_ref(A_x, A_k_cache, A_v_cache, A_wq, A_wo)
    b = _B_ref(B_x, B_k_cache, B_v_cache, B_wq, B_wo)
    return torch.concatenate([a, b], axis=-1)
```

```python
import re

def v(i): return f"v{i}"
def vr(i, n): return f"v[{i}:{i+n-1}]"
def s(i): return f"s{i}"
def sr(i, n): return f"s[{i}:{i+n-1}]"

class Asm:
    def __init__(self):
        self.lines = []
        self.t = 0
        self.w_valu = {}
        self.w_trans = {}
        self.w_mfma = {}
        self.rc_mfma = {}
        self.w_sgpr_valu = {}
        self.st_data = {}
        self.m0_t = -100
        self.vmq = []
        self.lgq = []
        self.nlabel = 0

    def raw(self, text):
        self.lines.append(text)
    def comment(self, text):
        self.lines.append("    ; " + text)
    def label(self, name):
        self.lines.append(name + ":")
    def newlabel(self, base="L"):
        self.nlabel += 1
        return f"{base}_{self.nlabel}"

    def _need(self, req):
        d = req - self.t
        while d > 0:
            n = min(d, 16)
            self.lines.append(f"    s_nop {n-1}")
            self.t += n
            d -= n

    def _issue(self, text):
        self.lines.append("    " + text)
        self.t += 1

    def nop(self, n):
        self._need(self.t + n)

    def _req_vread_valu(self, regs, trans_consumer=False):
        req = 0
        for r in regs:
            if r in self.w_mfma:
                t, p, _, _ = self.w_mfma[r]
                req = max(req, t + 1 + {2:5, 4:8, 8:12, 16:20}[p])
            if r in self.w_trans and not trans_consumer:
                req = max(req, self.w_trans[r] + 1 + 1)
        return req
    def _req_vwrite_valu(self, regs):
        req = 0
        for r in regs:
            if r in self.w_mfma:
                t, p, _, _ = self.w_mfma[r]
                req = max(req, t + 1 + {2:5, 4:8, 8:12, 16:20}[p])
            if r in self.rc_mfma:
                t, p = self.rc_mfma[r]
                req = max(req, t + 1 + {2:1, 4:3, 8:7, 16:15}[p])
            if r in self.st_data:
                req = max(req, self.st_data[r] + 1 + 2)
        return req

    def valu(self, text, dst=(), src=(), trans=False, sdst=(), ssrc=(), kind=None):
        dst = list(dst); src = list(src)
        req = max(self._req_vread_valu(src, trans_consumer=trans), self._req_vwrite_valu(dst))
        for sg in ssrc:
            if sg in self.w_sgpr_valu:
                req = max(req, self.w_sgpr_valu[sg] + 1 + (4 if kind == 'lanesel' else 2))
        if kind == 'permlane' or kind == 'dpp':
            for r in src + dst:
                if r in self.w_valu: req = max(req, self.w_valu[r] + 1 + 2)
                if r in self.w_trans: req = max(req, self.w_trans[r] + 1 + 2)
        if kind == 'readlane':
            for r in src:
                if r in self.w_valu: req = max(req, self.w_valu[r] + 1 + 1)
                if r in self.w_trans: req = max(req, self.w_trans[r] + 1 + 1)
        self._need(req)
        t = self.t
        self._issue(text)
        for r in dst:
            self.w_mfma.pop(r, None)
            if trans:
                self.w_trans[r] = t; self.w_valu.pop(r, None)
            else:
                self.w_valu[r] = t; self.w_trans.pop(r, None)
        for sg in sdst:
            self.w_sgpr_valu[sg] = t

    def mfma(self, shape, d, a, b, c):
        nd = 16 if shape == '32' else 4
        p = 8 if shape == '32' else 4
        name = "v_mfma_f32_32x32x16_bf16" if shape == '32' else "v_mfma_f32_16x16x32_bf16"
        D = list(range(d, d + nd)); A = list(range(a, a + 4)); B = list(range(b, b + 4))
        C = list(range(c, c + nd)) if c is not None else []
        req = 0
        for r in A + B + C:
            if r in self.w_valu: req = max(req, self.w_valu[r] + 1 + 2)
            if r in self.w_trans: req = max(req, self.w_trans[r] + 1 + 2)
        for r in A + B:
            if r in self.w_mfma:
                t, pp, _, _ = self.w_mfma[r]
                req = max(req, t + 1 + {2:5, 4:8, 8:12, 16:20}[pp])
        for r in C:
            if r in self.w_mfma:
                t, pp, db, dl = self.w_mfma[r]
                if db == c and dl == nd and pp == p:
                    req = max(req, t + 1 + (2 if pp == 2 else 0))
                else:
                    req = max(req, t + 1 + {2:4, 4:6, 8:10, 16:18}[pp])
        for r in D:
            if r in self.w_mfma and r not in C:
                t, pp, db, dl = self.w_mfma[r]
                req = max(req, t + 1 + {2:4, 4:6, 8:10, 16:18}[pp])
            if r in self.st_data:
                req = max(req, self.st_data[r] + 1 + 2)
        self._need(req)
        t = self.t
        cs = vr(c, nd) if c is not None else "0"
        self._issue(f"{name} {vr(d, nd)}, {vr(a, 4)}, {vr(b, 4)}, {cs}")
        for r in D:
            self.w_mfma[r] = (t, p, d, nd)
            self.w_valu.pop(r, None); self.w_trans.pop(r, None)
        for r in C:
            self.rc_mfma[r] = (t, p)

    def salu(self, text, m0=False):
        t = self.t
        self._issue(text)
        if m0: self.m0_t = t

    def _req_mem_read(self, regs, sregs=()):
        req = 0
        for r in regs:
            if r in self.w_mfma:
                t, p, _, _ = self.w_mfma[r]
                req = max(req, t + 1 + {2:5, 4:8, 8:12, 16:20}[p])
        for sg in sregs:
            if sg in self.w_sgpr_valu:
                req = max(req, self.w_sgpr_valu[sg] + 1 + 5)
        return req

    def _clear_loaded(self, dst):
        for r in dst:
            self.w_mfma.pop(r, None); self.w_valu.pop(r, None); self.w_trans.pop(r, None)

    def ds_read(self, text, dst, src, tag=None):
        dst = list(dst)
        req = max(self._req_mem_read(list(src) + dst), 0)
        for r in dst:
            if r in self.rc_mfma:
                t, p = self.rc_mfma[r]
                req = max(req, t + 1 + {2:1, 4:3, 8:7, 16:15}[p])
        self._need(req)
        self._issue(text)
        self._clear_loaded(dst)
        self.lgq.append(tag)
        assert len(self.lgq) <= 15, "too many LDS ops outstanding"
    def ds_write(self, text, src, tag=None):
        self._need(self._req_mem_read(list(src)))
        self._issue(text)
        self.lgq.append(tag)
        assert len(self.lgq) <= 15
    def vmem_load(self, text, dst, src, sregs=(), tag=None, q=None):
        dst = list(dst)
        self._need(self._req_mem_read(list(src) + dst, sregs))
        self._issue(text)
        self._clear_loaded(dst)
        (self.vmq if q is None else q).append(tag)
    def vmem_dma(self, text, src, sregs=(), tag=None, q=None):
        req = max(self._req_mem_read(list(src), sregs), self.m0_t + 1 + 1)
        self._need(req)
        self._issue(text)
        (self.vmq if q is None else q).append(tag)
    def vmem_store(self, text, src, data, sregs=(), tag=None, q=None):
        self._need(self._req_mem_read(list(src) + list(data), sregs))
        t = self.t
        self._issue(text)
        for r in data: self.st_data[r] = t
        (self.vmq if q is None else q).append(tag)

    def wait_vm(self, tag, q=None):
        q = self.vmq if q is None else q
        idx = max((i for i, x in enumerate(q) if x == tag), default=None)
        if idx is None: return
        n = len(q) - 1 - idx
        assert n <= 63
        self._issue(f"s_waitcnt vmcnt({n})")
        del q[:idx + 1]
    def wait_vm_all(self, q=None):
        q = self.vmq if q is None else q
        self._issue("s_waitcnt vmcnt(0)")
        q.clear()
    def wait_lg(self, tag):
        idx = max((i for i, x in enumerate(self.lgq) if x == tag), default=None)
        if idx is None: return
        n = len(self.lgq) - 1 - idx
        self._issue(f"s_waitcnt lgkmcnt({n})")
        del self.lgq[:idx + 1]
    def wait_lg_all(self, force=False):
        if self.lgq or force:
            self._issue("s_waitcnt lgkmcnt(0)")
            self.lgq.clear()
    def barrier(self):
        self._issue("s_barrier")

    def text(self):
        return "\n".join(self.lines) + "\n"
```

```python
import sys, struct
sys.path.insert(0, 'gen')
from asmlib import *

NAME = "concat_heads__gqa_block_cached__mha_block_cached__near_ridge"
import math
CSCALE = (128 ** -0.5) * math.log2(math.e)
def f32bits(x): return struct.unpack('<I', struct.pack('<f', x))[0]

KV_NT = True

def pipeline(a, jobs, PD, NB):
    n = len(jobs)
    for i in range(-PD, n):
        if i + PD < n:
            jobs[i + PD][0]((i + PD) % NB, ('job', i + PD))
        if i >= 0:
            a.wait_lg(('job', i))
            jobs[i][1](i % NB)

def load_kernargs(a):
    a.salu("s_load_dwordx16 s[48:63], s[0:1], 0")
    a.salu("s_load_dwordx8 s[64:71], s[0:1], 64")
    a.salu("s_load_dwordx2 s[72:73], s[0:1], 96")

def make_srd(a, d, lo, hi, size):
    a.salu(f"s_mov_b32 s{d}, {lo}")
    a.salu(f"s_and_b32 s{d+1}, {hi}, 0xffff")
    a.salu(f"s_mov_b32 s{d+2}, {size}")
    a.salu(f"s_mov_b32 s{d+3}, 0x00020000")

def gen_attn(a):
    QF, OA, SS, PP, FB = 16, 48, 112, 144, 160
    KA, VA, VKV, VW, VX, XA = 184, 192, 200, 204, 208, 212
    M, L, AL, MC, T0, T1, T2, T3 = 214, 215, 216, 218, 219, 220, 221, 222
    XF, VO = 224, 232
    NB = 6
    SLOT = 16384
    a.label("attn_kernel")
    a.salu("s_cmp_ge_u32 s2, 512")
    a.salu("s_cbranch_scc1 attn_done")
    load_kernargs(a)
    a.salu("s_and_b32 s31, s2, 7")
    a.salu("s_lshr_b32 s32, s2, 3")
    a.salu("s_lshr_b32 s33, s31, 2")
    a.salu("s_and_b32 s34, s31, 3")
    a.salu("s_and_b32 s35, s32, 7")
    a.salu("s_lshr_b32 s36, s32, 3")
    a.salu("s_lshl_b32 s34, s34, 3")
    a.salu("s_add_u32 s36, s36, s34")
    a.valu("v_and_b32 v1, 63, v0", [1], [0])
    a.valu("v_lshrrev_b32 v2, 6, v0", [2], [0])
    a.valu("v_readfirstlane_b32 s24, v2", [], [2], sdst=['s24'], kind='readlane')
    a.nop(4)
    a.salu("s_lshr_b32 s25, s24, 1")
    a.salu("s_and_b32 s26, s24, 1")
    a.salu("s_lshl_b32 s27, s26, 13")
    a.salu("s_lshl_b32 s28, s26, 12")
    a.salu(f"s_mov_b32 s30, 0x{f32bits(CSCALE):08x}")
    a.salu("s_waitcnt lgkmcnt(0)")
    a.salu("s_cmp_eq_u32 s33, 1")
    a.salu("s_cselect_b64 s[40:41], s[58:59], s[48:49]")
    a.salu("s_cselect_b64 s[42:43], s[60:61], s[50:51]")
    a.salu("s_cselect_b64 s[44:45], s[62:63], s[52:53]")
    a.salu("s_cselect_b64 s[46:47], s[64:65], s[54:55]")
    a.salu("s_mul_i32 s37, s35, 163840")
    a.salu("s_add_u32 s40, s40, s37"); a.salu("s_addc_u32 s41, s41, 0")
    make_srd(a, 4, "s40", "s41", 163840)
    a.salu("s_lshl_b32 s37, s36, 8")
    a.salu("s_add_u32 s46, s46, s37"); a.salu("s_addc_u32 s47, s47, 0")
    a.salu("s_sub_u32 s38, 5242880, s37")
    make_srd(a, 8, "s46", "s47", "s38")
    a.salu("s_lshl_b32 s37, s35, 5"); a.salu("s_add_u32 s37, s37, s36")
    a.salu("s_lshl_b32 s37, s37, 17")
    a.salu("s_add_u32 s42, s42, s37"); a.salu("s_addc_u32 s43, s43, 0")
    make_srd(a, 12, "s42", "s43", 131072)
    a.salu("s_add_u32 s44, s44, s37"); a.salu("s_addc_u32 s45, s45, 0")
    make_srd(a, 16, "s44", "s45", 131072)
    a.salu("s_lshl_b32 s37, s33, 3"); a.salu("s_add_u32 s37, s37, s35")
    a.salu("s_lshl_b32 s37, s37, 20")
    a.salu("s_add_u32 s72, s72, s37"); a.salu("s_addc_u32 s73, s73, 0")
    make_srd(a, 20, "s72", "s73", 1048576)

    a.valu("v_lshrrev_b32 v3, 4, v1", [3], [1])
    a.valu("v_and_b32 v4, 15, v1", [4], [1])
    a.valu("v_lshrrev_b32 v5, 5, v1", [5], [1])
    a.valu("v_and_b32 v6, 31, v1", [6], [1])
    a.valu("v_bfe_u32 v7, v1, 2, 2", [7], [1])
    a.valu("v_and_b32 v8, 3, v1", [8], [1])
    a.valu("v_and_b32 v9, 1, v3", [9], [3])
    for jj in range(4):
        a.valu(f"v_lshl_or_b32 v10, v3, 2, {jj}", [10], [3])
        a.valu("v_xor_b32 v10, v4, v10", [10], [4, 10])
        a.valu("v_lshlrev_b32 v10, 4, v10", [10], [10])
        a.valu(f"v_lshl_add_u32 v{VKV+jj}, v3, 8, v10", [VKV+jj], [3, 10])
        a.valu(f"v_lshl_add_u32 v11, v3, 13, v10", [11], [3, 10])
        a.valu(f"v_add_u32 v{VW+jj}, {jj*(4*8192-1024)}, v11", [VW+jj], [11])
    a.valu("v_lshrrev_b32 v10, 2, v1", [10], [1])
    a.valu("v_mul_u32_u24 v10, 0x500, v10", [10], [10])
    a.valu("v_xor_b32 v11, v8, v3", [11], [8, 3])
    a.valu("v_lshl_add_u32 v10, v11, 4, v10", [10], [11, 10])
    for jj in range(4):
        a.valu(f"v_add_u32 v{VX+jj}, {jj*(20480-1024)}, v10", [VX+jj], [10])
    a.valu("v_lshl_add_u32 v10, v2, 5, v6", [10], [2, 6])
    a.valu("v_bfe_u32 v11, v10, 2, 2", [11], [10])
    a.valu("v_xor_b32 v11, v5, v11", [11], [5, 11])
    a.valu("v_lshlrev_b32 v11, 4, v11", [11], [11])
    a.valu(f"v_lshl_add_u32 v{XA}, v10, 6, v11", [XA], [10, 11])
    a.valu(f"v_add_u32 v{XA}, 0x2000, v{XA}", [XA], [XA])
    a.valu(f"v_xor_b32 v{XA+1}, 32, v{XA}", [XA+1], [XA])
    a.valu("v_and_b32 v10, 1, v8", [10], [8])
    a.valu("v_lshl_or_b32 v10, v9, 1, v10", [10], [9, 10])
    a.valu("v_lshrrev_b32 v11, 1, v8", [11], [8])
    for u in range(2):
        a.valu(f"v_lshl_or_b32 v12, v5, 1, {u}", [12], [5])
        a.valu("v_xor_b32 v13, v10, v12", [13], [10, 12])
        a.valu("v_lshlrev_b32 v13, 4, v13", [13], [13])
        a.valu("v_lshl_add_u32 v13, v11, 3, v13", [13], [11, 13])
        a.valu("v_lshl_add_u32 v14, v12, 2, v7", [14], [12, 7])
        a.valu("v_lshl_add_u32 v13, v14, 8, v13", [13], [14, 13])
        a.valu("v_lshl_add_u32 v13, v7, 6, v13", [13], [7, 13])
        for t in range(4):
            a.valu(f"v_xor_b32 v{VA+2*t+u}, {t*64}, v13", [VA+2*t+u], [13])
    a.valu("v_and_b32 v10, 3, v6", [10], [6])
    a.valu("v_bfe_u32 v11, v6, 2, 2", [11], [6])
    a.valu("v_lshl_or_b32 v10, v10, 2, v11", [10], [10, 11])
    a.valu("v_xor_b32 v10, v5, v10", [10], [5, 10])
    a.valu("v_lshlrev_b32 v10, 4, v10", [10], [10])
    a.valu("v_lshl_add_u32 v10, v6, 8, v10", [10], [6, 10])
    for s_ in range(8):
        a.valu(f"v_xor_b32 v{KA+s_}, {s_*32}, v10", [KA+s_], [10])
    a.valu("v_lshl_add_u32 v10, v2, 1, v9", [10], [2, 9])
    a.valu("v_lshlrev_b32 v10, 17, v10", [10], [10])
    a.valu("v_lshl_add_u32 v11, v5, 4, v4", [11], [5, 4])
    a.valu(f"v_lshl_add_u32 v{VO}, v11, 4, v10", [VO], [11, 10])

    qA, qB = [], []
    nt = " nt" if KV_NT else ""

    def issue_P(stage, slot):
        a.salu(f"s_add_u32 m0, s28, {slot*SLOT}", m0=True)
        a.salu(f"s_lshl_b32 s29, s26, 17")
        a.salu(f"s_add_u32 s29, s29, {stage*32*8192}")
        for jj in range(4):
            a.vmem_dma(f"buffer_load_dwordx4 v{VW+jj}, s[8:11], s29 offen offset:{jj*1024} lds", [VW+jj], tag=('P', stage), q=qA)
        a.salu(f"s_add_u32 m0, s28, {slot*SLOT+8192}", m0=True)
        a.salu(f"s_mul_i32 s29, s26, {64*1280}")
        a.salu(f"s_add_u32 s29, s29, {stage*64}")
        for jj in range(4):
            a.vmem_dma(f"buffer_load_dwordx4 v{VX+jj}, s[4:7], s29 offen offset:{jj*1024} lds", [VX+jj], tag=('P', stage), q=qA)

    def issue_KV(n, slot, q):
        srd = "s[12:15]" if n % 2 == 0 else "s[16:19]"
        for grp in range(2):
            a.salu(f"s_add_u32 m0, s27, {slot*SLOT+grp*4096}", m0=True)
            a.salu(f"s_add_u32 s29, s27, {(n//2)*16384+grp*4096}")
            for jj in range(4):
                a.vmem_dma(f"buffer_load_dwordx4 v{VKV+jj}, {srd}, s29 offen offset:{jj*1024}{nt} lds", [VKV+jj], tag=('KV', n), q=q)

    def role_block(fa, fb):
        lb, lj = a.newlabel("RB"), a.newlabel("RJ")
        a.salu("s_cmp_eq_u32 s25, 1")
        a.salu(f"s_cbranch_scc1 {lb}")
        t0 = a.t
        fa()
        a.salu(f"s_branch {lj}")
        ta = a.t
        a.t = t0
        a.label(lb)
        fb()
        tb = a.t
        a.label(lj)
        a.t = min(ta, tb)

    kv_slot = {0: 3, 1: 4, 2: 2, 3: 0, 4: 1}
    for n in range(5, 16): kv_slot[n] = kv_slot[n - 5]
    kv_role = {n: ('B' if (n < 4 or n % 2 == 1) else 'A') for n in range(16)}

    def pa():
        for st in range(3): issue_P(st, st)
    def pb():
        issue_KV(0, kv_slot[0], qB); issue_KV(1, kv_slot[1], qB)
    role_block(pa, pb)

    for st in range(20):
        slot = st % 3
        def fa(st=st):
            a.wait_vm(('P', st), q=qA)
            a.barrier()
            if st >= 1 and st + 2 < 20:
                issue_P(st + 2, (st - 1) % 3)
        def fb(st=st):
            a.barrier()
            if st == 18: issue_KV(2, kv_slot[2], qB)
            if st == 19: issue_KV(3, kv_slot[3], qB)
        role_block(fa, fb)
        jobs = []
        for sp in range(2):
            for t in range(4):
                def rd(buf, tag, sp=sp, t=t):
                    if t == 0:
                        a.ds_read(f"ds_read_b128 {vr(XF+4*sp,4)}, v{XA+sp} offset:{slot*SLOT}", range(XF+4*sp, XF+4*sp+4), [XA+sp], tag=tag)
                    for u in range(2):
                        d = FB + 4*buf + 2*u
                        a.ds_read(f"ds_read_b64_tr_b16 {vr(d,2)}, v{VA+2*t+u} offset:{slot*SLOT+sp*4096}", [d, d+1], [VA+2*t+u], tag=tag)
                def mm(buf, sp=sp, t=t, st=st):
                    first = (st == 0 and sp == 0)
                    a.mfma('32', OA+16*t, FB+4*buf, XF+4*sp, None if first else OA+16*t)
                jobs.append((rd, mm))
        pipeline(a, jobs, 4, NB)

    for s_ in range(8):
        t = s_ >> 1
        for ii in range(4):
            r = OA + 16*t + 8*(s_ & 1) + 2*ii
            a.valu(f"v_cvt_pk_bf16_f32 v{QF+4*s_+ii}, v{r}, v{r+1}", [QF+4*s_+ii], [r, r+1])
    a.valu("v_lshrrev_b32 v10, 1, v8", [10], [8])
    a.valu("v_lshl_or_b32 v10, v9, 1, v10", [10], [9, 10])
    a.valu("v_and_b32 v11, 1, v8", [11], [8])
    for u in range(2):
        a.valu(f"v_or_b32 v12, {2*u}, v5", [12], [5])
        a.valu("v_xor_b32 v13, v10, v12", [13], [10, 12])
        a.valu("v_lshlrev_b32 v13, 4, v13", [13], [13])
        a.valu("v_lshl_add_u32 v13, v11, 3, v13", [13], [11, 13])
        a.valu("v_lshl_add_u32 v14, v12, 2, v7", [14], [12, 7])
        a.valu("v_lshl_add_u32 v13, v14, 8, v13", [13], [14, 13])
        a.valu("v_lshl_add_u32 v13, v7, 6, v13", [13], [7, 13])
        for t in range(4):
            a.valu(f"v_xor_b32 v{VA+2*t+u}, {t*64}, v13", [VA+2*t+u], [13])

    base = {'K': 0, 'V': 0}
    def rebase(which, slot):
        regs = range(KA, KA+8) if which == 'K' else range(VA, VA+8)
        need = base[which]
        if slot == 4: need = SLOT
        if slot == 0: need = 0
        if need != base[which]:
            for r in regs:
                if need > base[which]:
                    a.valu(f"v_add_u32 v{r}, {need-base[which]}, v{r}", [r], [r])
                else:
                    a.valu(f"v_subrev_u32 v{r}, {base[which]-need}, v{r}", [r], [r])
            base[which] = need
        return slot * SLOT - base[which]

    for n in range(16):
        slot = kv_slot[n]
        T = n // 2
        off = rebase('K' if n % 2 == 0 else 'V', slot)
        def mk(role, n=n):
            q = qA if role == 'A' else qB
            def f():
                if kv_role[n] == role:
                    a.wait_vm(('KV', n), q=q)
                a.barrier()
                if n + 4 < 16 and kv_role[n + 4] == role:
                    issue_KV(n + 4, kv_slot[n + 4], q)
            return f
        role_block(mk('A'), mk('B'))
        jobs = []
        if n % 2 == 0:
            for kt in range(2):
                for s_ in range(8):
                    def rd(buf, tag, kt=kt, s_=s_):
                        d = FB + 4*buf
                        a.ds_read(f"ds_read_b128 {vr(d,4)}, v{KA+s_} offset:{off+kt*8192}", range(d, d+4), [KA+s_], tag=tag)
                    def mm(buf, kt=kt, s_=s_):
                        a.mfma('32', SS+16*kt, FB+4*buf, QF+4*s_, None if s_ == 0 else SS+16*kt)
                    jobs.append((rd, mm))
            pipeline(a, jobs, 5, NB)
            for c_, tr in ((0, T0), (16, T1)):
                a.valu(f"v_max3_f32 v{tr}, v{SS+c_}, v{SS+c_+1}, v{SS+c_+2}", [tr], [SS+c_, SS+c_+1, SS+c_+2])
                for k in range(3, 15, 2):
                    a.valu(f"v_max3_f32 v{tr}, v{tr}, v{SS+c_+k}, v{SS+c_+k+1}", [tr], [tr, SS+c_+k, SS+c_+k+1])
            a.valu(f"v_max3_f32 v{T0}, v{T0}, v{T1}, v{SS+15}", [T0], [T0, T1, SS+15])
            a.valu(f"v_max_f32 v{T0}, v{T0}, v{SS+31}", [T0], [T0, SS+31])
            a.valu(f"v_mov_b32 v{T1}, v{T0}", [T1], [T0])
            a.valu(f"v_permlane32_swap_b32 v{T0}, v{T1}", [T0, T1], [T0, T1], kind='permlane')
            if T == 0:
                a.valu(f"v_max_f32 v{M}, v{T0}, v{T1}", [M], [T0, T1])
            else:
                a.valu(f"v_max3_f32 v{T2}, v{T0}, v{T1}, v{M}", [T2], [T0, T1, M])
                a.valu(f"v_sub_f32 v{T3}, v{M}, v{T2}", [T3], [M, T2])
                a.valu(f"v_mul_f32 v{T3}, s30, v{T3}", [T3], [T3])
                a.valu(f"v_exp_f32 v{AL}, v{T3}", [AL], [T3], trans=True)
                a.valu(f"v_mov_b32 v{M}, v{T2}", [M], [T2])
            a.valu(f"v_mul_f32 v{MC}, s30, v{M}", [MC], [M])
            for i in range(32):
                a.valu(f"v_fma_f32 v{SS+i}, v{SS+i}, s30, -v{MC}", [SS+i], [SS+i, MC])
            for i in range(32):
                a.valu(f"v_exp_f32 v{SS+i}, v{SS+i}", [SS+i], [SS+i], trans=True)
            for c_, tr in ((0, T0), (8, T1), (16, T2), (24, T3)):
                a.valu(f"v_add_f32 v{tr}, v{SS+c_}, v{SS+c_+1}", [tr], [SS+c_, SS+c_+1])
            for k in range(2, 8):
                for c_, tr in ((0, T0), (8, T1), (16, T2), (24, T3)):
                    a.valu(f"v_add_f32 v{tr}, v{tr}, v{SS+c_+k}", [tr], [tr, SS+c_+k])
            a.valu(f"v_add_f32 v{T0}, v{T0}, v{T1}", [T0], [T0, T1])
            a.valu(f"v_add_f32 v{T2}, v{T2}, v{T3}", [T2], [T2, T3])
            if T == 0:
                a.valu(f"v_add_f32 v{L}, v{T0}, v{T2}", [L], [T0, T2])
            else:
                a.valu(f"v_add_f32 v{T0}, v{T0}, v{T2}", [T0], [T0, T2])
                a.valu(f"v_fma_f32 v{L}, v{L}, v{AL}, v{T0}", [L], [L, AL, T0])
            for i in range(16):
                a.valu(f"v_cvt_pk_bf16_f32 v{PP+i}, v{SS+2*i}, v{SS+2*i+1}", [PP+i], [SS+2*i, SS+2*i+1])
            if T > 0:
                for i in range(0, 64, 2):
                    a.valu(f"v_pk_mul_f32 {vr(OA+i,2)}, {vr(OA+i,2)}, {vr(AL,2)} op_sel_hi:[1,0]", [OA+i, OA+i+1], [OA+i, OA+i+1, AL])
        else:
            for j in range(4):
                for t in range(4):
                    def rd(buf, tag, j=j, t=t):
                        for u in range(2):
                            d = FB + 4*buf + 2*u
                            a.ds_read(f"ds_read_b64_tr_b16 {vr(d,2)}, v{VA+2*t+u} offset:{off+j*4096}", [d, d+1], [VA+2*t+u], tag=tag)
                    def mm(buf, j=j, t=t, T=T):
                        first = (T == 0 and j == 0)
                        a.mfma('32', OA+16*t, FB+4*buf, PP+4*j, None if first else OA+16*t)
                    jobs.append((rd, mm))
            pipeline(a, jobs, 4, NB)

    a.valu(f"v_mov_b32 v{T0}, v{L}", [T0], [L])
    a.valu(f"v_mov_b32 v{T1}, v{L}", [T1], [L])
    a.valu(f"v_permlane32_swap_b32 v{T0}, v{T1}", [T0, T1], [T0, T1], kind='permlane')
    a.valu(f"v_add_f32 v{T0}, v{T0}, v{T1}", [T0], [T0, T1])
    a.valu(f"v_rcp_f32 v{AL}, v{T0}", [AL], [T0], trans=True)
    a.salu("s_lshl_b32 s29, s36, 12")
    for t in range(4):
        for i in range(0, 16, 2):
            r = OA + 16*t + i
            a.valu(f"v_pk_mul_f32 {vr(r,2)}, {vr(r,2)}, {vr(AL,2)} op_sel_hi:[1,0]", [r, r+1], [r, r+1, AL])
        for piece in range(2):
            d = SS + 8*t + 4*piece
            for k, rr in enumerate((4*piece, 4*piece+2, 8+4*piece, 8+4*piece+2)):
                r = OA + 16*t + rr
                a.valu(f"v_cvt_pk_bf16_f32 v{d+k}, v{r}, v{r+1}", [d+k], [r, r+1])
            a.vmem_store(f"buffer_store_dwordx4 {vr(d,4)}, v{VO}, s[20:23], s29 offen offset:{t*1024+piece*512}", [VO], range(d, d+4), tag='O')
    a.label("attn_done")
    a.salu("s_endpgm")

def gen_oproj(a):
    ACC, BF, AF = 16, 96, 160
    VWO, VOF, TA, VST = 200, 208, 212, 213
    a.label("oproj_kernel")
    a.salu("s_cmp_ge_u32 s2, 256")
    a.salu("s_cbranch_scc1 oproj_done")
    load_kernargs(a)
    a.salu("s_and_b32 s31, s2, 7")
    a.salu("s_lshr_b32 s32, s2, 3")
    a.salu("s_lshr_b32 s33, s31, 2")
    a.salu("s_bfe_u32 s34, s31, 0x10001")
    a.salu("s_and_b32 s35, s31, 1")
    a.salu("s_and_b32 s36, s32, 7")
    a.salu("s_lshl_b32 s34, s34, 3")
    a.salu("s_add_u32 s34, s34, s36")
    a.salu("s_lshr_b32 s36, s32, 3")
    a.salu("s_lshl_b32 s35, s35, 2")
    a.salu("s_add_u32 s35, s35, s36")
    a.valu("v_and_b32 v1, 63, v0", [1], [0])
    a.valu("v_lshrrev_b32 v2, 6, v0", [2], [0])
    a.valu("v_readfirstlane_b32 s24, v2", [], [2], sdst=['s24'], kind='readlane')
    a.nop(4)
    a.salu("s_waitcnt lgkmcnt(0)")
    a.salu("s_cmp_eq_u32 s33, 1")
    a.salu("s_cselect_b64 s[40:41], s[66:67], s[56:57]")
    a.salu("s_mul_i32 s37, s35, 160")
    a.salu("s_add_u32 s40, s40, s37"); a.salu("s_addc_u32 s41, s41, 0")
    a.salu("s_sub_u32 s38, 5242880, s37")
    make_srd(a, 4, "s40", "s41", "s38")
    a.salu("s_lshl_b32 s37, s33, 4"); a.salu("s_add_u32 s37, s37, s34")
    a.salu("s_lshl_b32 s37, s37, 19")
    a.salu("s_add_u32 s72, s72, s37"); a.salu("s_addc_u32 s73, s73, 0")
    make_srd(a, 8, "s72", "s73", 524288)
    a.salu("s_mul_i32 s37, s34, 163840")
    a.salu("s_mul_i32 s38, s33, 1280"); a.salu("s_add_u32 s37, s37, s38")
    a.salu("s_mul_i32 s38, s35, 160"); a.salu("s_add_u32 s37, s37, s38")
    a.salu("s_add_u32 s68, s68, s37"); a.salu("s_addc_u32 s69, s69, 0")
    a.salu("s_sub_u32 s38, 2621440, s37")
    make_srd(a, 12, "s68", "s69", "s38")
    a.salu("s_mul_i32 s27, s24, 20480")
    a.salu("s_mul_i32 s28, s24, 1310720")
    a.salu("s_lshl_b32 s26, s24, 15")
    a.valu("v_lshrrev_b32 v3, 4, v1", [3], [1])
    a.valu("v_and_b32 v4, 15, v1", [4], [1])
    a.valu("v_bfe_u32 v7, v1, 2, 2", [7], [1])
    a.valu("v_and_b32 v8, 3, v1", [8], [1])
    a.salu("s_mov_b32 s39, 0x1999999a")
    for jj in range(5):
        a.valu(f"v_add_u32 v10, {64*jj}, v1", [10], [1])
        a.valu("v_mul_hi_u32 v11, v10, s39", [11], [10])
        a.valu("v_mul_u32_u24 v12, 10, v11", [12], [11])
        a.valu("v_sub_u32 v12, v10, v12", [12], [10, 12])
        a.valu("v_mul_u32_u24 v11, 0x500, v11", [11], [11])
        a.valu(f"v_lshl_add_u32 v{VWO+jj}, v12, 4, v11", [VWO+jj], [12, 11])
        if 0 < jj < 4:
            a.valu(f"v_subrev_u32 v{VWO+jj}, {1024*jj}, v{VWO+jj}", [VWO+jj], [VWO+jj])
    for qt in range(4):
        a.valu(f"v_lshlrev_b32 v10, 4, v1", [10], [1])
        a.valu(f"v_add_u32 v{VOF+qt}, {qt*131072}, v10", [VOF+qt], [10])
    a.valu("v_lshl_add_u32 v10, v3, 2, v7", [10], [3, 7])
    a.valu("v_mul_u32_u24 v10, 160, v10", [10], [10])
    a.valu("v_lshl_add_u32 v10, v8, 3, v10", [10], [8, 10])
    a.valu(f"v_add_u32 v{TA}, s27, v10", [TA], [10])

    def issue(ks):
        slot = ks % 4
        a.salu(f"s_add_u32 m0, s27, {slot*5120}", m0=True)
        a.salu(f"s_add_u32 s29, s28, {ks*40960}")
        for jj in range(4):
            a.vmem_dma(f"buffer_load_dwordx4 v{VWO+jj}, s[4:7], s29 offen offset:{jj*1024} lds", [VWO+jj], tag=('ks', ks))
        a.salu(f"s_add_u32 m0, s27, {slot*5120+4096}", m0=True)
        a.salu(f"s_add_u32 s30, s26, {ks*1024}")
        a.vmem_dma(f"buffer_load_dwordx4 v{VWO+4}, s[4:7], s29 offen lds", [VWO+4], tag=('ks', ks))
        for qt in range(4):
            d = BF + 16*slot + 4*qt
            a.vmem_load(f"buffer_load_dwordx4 {vr(d,4)}, v{VOF+qt}, s[8:11], s30 offen", range(d, d+4), [VOF+qt], tag=('ks', ks))

    def read_A(ks):
        slot = ks % 4
        ab = AF + 20 * (ks % 2)
        for nt_ in range(5):
            for u in range(2):
                d = ab + 4*nt_ + 2*u
                a.ds_read(f"ds_read_b64_tr_b16 {vr(d,2)}, v{TA} offset:{slot*5120+u*2560+nt_*32}", [d, d+1], [TA], tag=('A', ks, nt_))

    NK = 32
    for ks in range(3): issue(ks)
    a.wait_vm(('ks', 0))
    read_A(0)
    for ks in range(NK):
        if ks + 3 < NK: issue(ks + 3)
        slot = ks % 4
        ab = AF + 20 * (ks % 2)
        for nt_ in range(5):
            a.wait_lg(('A', ks, nt_))
            for qt in range(4):
                d = ACC + 4*(nt_*4 + qt)
                a.mfma('16', d, ab + 4*nt_, BF + 16*slot + 4*qt, None if ks == 0 else d)
            if nt_ == 2 and ks + 1 < NK:
                a.wait_vm(('ks', ks + 1))
                read_A(ks + 1)
    a.valu(f"v_lshlrev_b32 v10, 4, v1", [10], [1])
    a.valu(f"v_add_u32 v11, s27, v10", [11], [10])
    for tile in range(20):
        d = ACC + 4*tile
        a.ds_write(f"ds_write_b128 v11, {vr(d,4)} offset:{tile*1024}", [11] + list(range(d, d+4)))
        if len(a.lgq) >= 12: a.wait_lg_all()
    a.wait_lg_all()
    a.barrier()
    a.salu("s_lshl_b32 s29, s24, 10")
    a.valu(f"v_add_u32 v11, s29, v10", [11], [10])
    a.valu(f"v_add_u32 v12, 0xa000, v11", [12], [11])
    for nt_ in range(5):
        for src in range(4):
            d = BF + 16*nt_ + 4*src if nt_ < 4 else AF + 4*src
            ar = 11 if src < 2 else 12
            a.ds_read(f"ds_read_b128 {vr(d,4)}, v{ar} offset:{(src%2)*20480 + nt_*4096}", range(d, d+4), [ar], tag=('R', nt_))
        if nt_ == 2: a.wait_lg_all()
    a.wait_lg_all()
    a.valu("v_lshl_add_u32 v10, v2, 4, v4", [10], [2, 4])
    a.valu("v_mul_u32_u24 v10, 0xa00, v10", [10], [10])
    a.valu(f"v_lshl_add_u32 v{VST}, v3, 3, v10", [VST], [3, 10])
    for nt_ in range(5):
        d = BF + 16*nt_ if nt_ < 4 else AF
        for k in range(4):
            a.valu(f"v_add_f32 v{d+k}, v{d+k}, v{d+4+k}", [d+k], [d+k, d+4+k])
            a.valu(f"v_add_f32 v{d+8+k}, v{d+8+k}, v{d+12+k}", [d+8+k], [d+8+k, d+12+k])
        for k in range(4):
            a.valu(f"v_add_f32 v{d+k}, v{d+k}, v{d+8+k}", [d+k], [d+k, d+8+k])
        a.valu(f"v_cvt_pk_bf16_f32 v{d+4}, v{d}, v{d+1}", [d+4], [d, d+1])
        a.valu(f"v_cvt_pk_bf16_f32 v{d+5}, v{d+2}, v{d+3}", [d+5], [d+2, d+3])
        a.vmem_store(f"buffer_store_dwordx2 {vr(d+4,2)}, v{VST}, s[12:15], 0 offen offset:{nt_*32}", [VST], [d+4, d+5], tag='st')
    a.label("oproj_done")
    a.salu("s_endpgm")

def kd(name, vgpr):
    return f""".p2align 6
.amdhsa_kernel {name}
  .amdhsa_next_free_vgpr {vgpr}
  .amdhsa_next_free_sgpr 102
  .amdhsa_accum_offset {vgpr}
  .amdhsa_group_segment_fixed_size 0
  .amdhsa_kernarg_size 104
  .amdhsa_user_sgpr_count 2
  .amdhsa_user_sgpr_kernarg_segment_ptr 1
  .amdhsa_system_sgpr_workgroup_id_x 1
.end_amdhsa_kernel
"""

def main(out):
    hdr = """; Generated by gen/gen_v1.py (hand-written generator).
; @launch kernel=attn_kernel grid=(512,1,1) block=(256,1,1) lds=81920
; @launch kernel=oproj_kernel grid=(256,1,1) block=(256,1,1) lds=81920
.amdgcn_target "amdgcn-amd-amdhsa--gfx950"
.text
"""
    body = ""
    for name, g in (("attn_kernel", gen_attn), ("oproj_kernel", gen_oproj)):
        a = Asm()
        g(a)
        body += f".globl {name}\n.p2align 8\n.type {name},@function\n" + a.text()
    tail = '.section .rodata,"a"\n' + kd("attn_kernel", 240) + kd("oproj_kernel", 224)
    open(out, "w").write(hdr + body + tail)

if __name__ == "__main__":
    main(sys.argv[1] if len(sys.argv) > 1 else f"cdna_kernels/{NAME}.s")
```

```python
import sys, struct, os, math
sys.path.insert(0, 'gen')
from asmlib import *

NAME = "concat_heads__gqa_block_cached__mha_block_cached__near_ridge"
KNAME = NAME + "_kernel"
CSCALE = (128 ** -0.5) * math.log2(math.e)
def f32bits(x): return struct.unpack('<I', struct.pack('<f', x))[0]

KV_NT = int(os.environ.get("KV_NT", "1"))
STAMP = int(os.environ.get("STAMP", "0"))
SPIN_LIMIT = 1 << 21
OWS_OFF, QWS_OFF, WOP_OFF, FLG_OFF, STAMP_OFF = 0, 16 << 20, 32 << 20, 48 << 20, 64 << 20
FO_OFF, FW_OFF = 65536, 131072

def pipeline(a, jobs, PD, NB, hook=None):
    n = len(jobs)
    for i in range(-PD, n):
        if i + PD < n:
            if hook: hook(i + PD)
            jobs[i + PD][0]((i + PD) % NB, ('job', i + PD))
        if i >= 0:
            a.wait_lg(('job', i))
            jobs[i][1](i % NB)

def make_srd(a, d, lo, hi, size):
    a.salu(f"s_mov_b32 s{d}, {lo}")
    a.salu(f"s_and_b32 s{d+1}, {hi}, 0xffff")
    a.salu(f"s_mov_b32 s{d+2}, {size}")
    a.salu(f"s_mov_b32 s{d+3}, 0x00020000")

def srd_from(a, d, base_lo, base_hi, off_sreg, size, const_off=0):
    a.salu(f"s_add_u32 s{d}, {base_lo}, {off_sreg}")
    a.salu(f"s_addc_u32 s{d+1}, {base_hi}, 0")
    if const_off:
        a.salu(f"s_add_u32 s{d}, s{d}, {const_off}")
        a.salu(f"s_addc_u32 s{d+1}, s{d+1}, 0")
    a.salu(f"s_and_b32 s{d+1}, s{d+1}, 0xffff")
    a.salu(f"s_mov_b32 s{d+2}, {size}")
    a.salu(f"s_mov_b32 s{d+3}, 0x00020000")

def spin(a, vp, voff, srd, soff, cmp_with, want_equal=True):
    l, ld = a.newlabel("SP"), a.newlabel("SD")
    a.salu("s_mov_b32 s95, 0")
    a.nop(4)
    a.label(l)
    a.raw(f"    buffer_load_dword v{vp}, v{voff}, {srd}, {soff} offen sc1")
    a.raw("    s_waitcnt vmcnt(0)")
    a.raw(f"    v_cmp_{'ne' if want_equal else 'eq'}_u32 vcc, {cmp_with}, v{vp}")
    a.raw(f"    s_cbranch_vccz {ld}")
    a.raw("    s_add_u32 s95, s95, 1")
    a.raw(f"    s_cmp_gt_u32 s95, {SPIN_LIMIT}")
    a.raw(f"    s_cbranch_scc1 {ld}")
    a.raw("    s_sleep 2")
    a.raw(f"    s_branch {l}")
    a.label(ld)
    a.vmq.clear()
    a.nop(4)

class Stamper:
    def __init__(self, a, vtmp, vzero):
        self.a, self.vt, self.vz = a, vtmp, vzero
    def setup(self):
        a = self.a
        if not STAMP: return
        a.salu("s_mov_b32 s78, 0")
        srd_from(a, 80, "s72", "s73", "s78", 1 << 20, STAMP_OFF)
        a.salu("s_lshl_b32 s78, s2, 2"); a.salu("s_add_u32 s78, s78, s24"); a.salu("s_lshl_b32 s78, s78, 8")
    def __call__(self, idx):
        a = self.a
        if not STAMP: return
        a.wait_lg_all()
        if idx == 0:
            a.salu("s_getreg_b32 s90, hwreg(HW_REG_HW_ID)")
            a.salu("s_getreg_b32 s91, hwreg(HW_REG_XCC_ID)")
            a.salu("s_lshl_b32 s91, s91, 24")
            a.salu("s_and_b32 s90, s90, 0xffffff")
            a.salu("s_or_b32 s90, s90, s91")
            a.valu(f"v_mov_b32 v{self.vt}, s90", [self.vt], [])
            a.vmem_store(f"buffer_store_dword v{self.vt}, v{self.vz}, s[80:83], s78 offen offset:252", [self.vz], [self.vt], tag='stamp')
        a.salu("s_memrealtime s[90:91]")
        a.salu("s_waitcnt lgkmcnt(0)")
        a.valu(f"v_mov_b32 v{self.vt}, s90", [self.vt], [])
        a.vmem_store(f"buffer_store_dword v{self.vt}, v{self.vz}, s[80:83], s78 offen offset:{idx*4}", [self.vz], [self.vt], tag='stamp')

def common_prologue(a):
    a.label(KNAME)
    a.salu("s_cmp_ge_u32 s2, 512")
    a.salu("s_cbranch_scc1 L_done")
    a.salu("s_load_dwordx16 s[48:63], s[0:1], 0")
    a.salu("s_load_dwordx8 s[64:71], s[0:1], 64")
    a.salu("s_load_dwordx2 s[72:73], s[0:1], 96")
    a.salu("s_and_b32 s31, s2, 7")
    a.salu("s_bfe_u32 s32, s2, 0x50003")
    a.salu("s_lshr_b32 s33, s31, 2")
    a.salu("s_and_b32 s34, s31, 3")
    a.salu("s_and_b32 s35, s32, 7")
    a.salu("s_lshr_b32 s36, s32, 3")
    a.salu("s_lshl_b32 s37, s34, 3")
    a.salu("s_add_u32 s37, s37, s36")
    a.salu("s_lshl_b32 s38, s33, 3")
    a.salu("s_add_u32 s38, s38, s35")
    a.salu("s_lshl_b32 s39, s38, 5")
    a.salu("s_add_u32 s39, s39, s37")
    a.valu("v_and_b32 v1, 63, v0", [1], [0])
    a.valu("v_lshrrev_b32 v2, 6, v0", [2], [0])
    a.valu("v_readfirstlane_b32 s24, v2", [], [2], sdst=['s24'], kind='readlane')
    a.valu("v_lshrrev_b32 v3, 4, v1", [3], [1])
    a.valu("v_and_b32 v4, 15, v1", [4], [1])
    a.valu("v_lshrrev_b32 v5, 5, v1", [5], [1])
    a.valu("v_and_b32 v6, 31, v1", [6], [1])
    a.valu("v_bfe_u32 v7, v1, 2, 2", [7], [1])
    a.valu("v_and_b32 v8, 3, v1", [8], [1])
    a.valu("v_and_b32 v9, 1, v3", [9], [3])
    a.valu("v_mov_b32 v15, 0", [15], [])
    a.salu("s_waitcnt lgkmcnt(0)")
    a.salu("s_cmp_eq_u32 s33, 1")
    a.salu("s_cselect_b64 s[40:41], s[58:59], s[48:49]")
    a.salu("s_cselect_b64 s[42:43], s[60:61], s[50:51]")
    a.salu("s_cselect_b64 s[44:45], s[62:63], s[52:53]")
    a.salu("s_cselect_b64 s[46:47], s[64:65], s[54:55]")
    a.salu("s_cselect_b64 s[74:75], s[66:67], s[56:57]")
    a.salu("s_mov_b32 s29, 0")
    srd_from(a, 8, "s72", "s73", "s29", 1 << 20, FLG_OFF)
    make_srd(a, 84, "s70", "s71", 256)
    a.salu("s_cmp_ge_u32 s2, 256")
    a.salu("s_cbranch_scc1 L_stream")

def get_nonce(a, vp):
    spin(a, vp, 15, "s[84:87]", "0", "0", want_equal=False)
    a.valu(f"v_readfirstlane_b32 s94, v{vp}", [], [vp], sdst=['s94'], kind='readlane')
    a.nop(5)

def gen_G(a):
    OA, FB, XF = 16, 80, 104
    WA, VW, VX, XA, VQ = 136, 144, 146, 150, 154
    QF = 160
    VP, VT = 14, 13
    NB = 6
    st = Stamper(a, VT, 15)
    st.setup()
    st(0)
    l0 = a.newlabel("NN")
    a.salu("s_cmp_lg_u32 s2, 0")
    a.salu(f"s_cbranch_scc1 {l0}")
    a.salu("s_memrealtime s[90:91]")
    a.salu("s_waitcnt lgkmcnt(0)")
    a.salu("s_or_b32 s90, s90, 1")
    a.valu(f"v_mov_b32 v{VP}, s90", [VP], [])
    a.raw(f"    buffer_store_dword v{VP}, v15, s[84:87], 0 offen sc1")
    a.raw("    s_waitcnt vmcnt(0)")
    a.label(l0)
    a.nop(3)
    a.salu("s_mul_i32 s29, s35, 163840")
    srd_from(a, 4, "s40", "s41", "s29", 163840)
    a.salu("s_lshl_b32 s29, s39, 15")
    srd_from(a, 16, "s72", "s73", "s29", 5 * 32768, QWS_OFF)
    for jj in range(2):
        a.valu(f"v_lshl_or_b32 v10, v2, 1, {jj}", [10], [2])
        a.valu("v_and_b32 v10, 3, v10", [10], [10])
        a.valu("v_lshl_or_b32 v10, v3, 2, v10", [10], [3, 10])
        a.valu("v_xor_b32 v10, v4, v10", [10], [4, 10])
        a.valu("v_lshlrev_b32 v10, 4, v10", [10], [10])
        a.valu("v_lshl_add_u32 v10, v3, 13, v10", [10], [3, 10])
        a.valu(f"v_add_u32 v{VW+jj}, {jj*(4*8192-1024)}, v10", [VW+jj], [10])
    a.valu("v_lshrrev_b32 v11, 3, v1", [11], [1])
    a.valu("v_mul_u32_u24 v11, 0x500, v11", [11], [11])
    a.valu("v_and_b32 v12, 7, v1", [12], [1])
    for jj in range(4):
        a.valu(f"v_add_u32 v10, {(4*jj) & 7}, v3", [10], [3])
        a.valu("v_xor_b32 v10, v12, v10", [10], [12, 10])
        a.valu("v_lshl_add_u32 v10, v10, 4, v11", [10], [10, 11])
        a.valu(f"v_add_u32 v{VX+jj}, {jj*(8*1280-1024)}, v10", [VX+jj], [10])
    a.valu("v_bfe_u32 v10, v6, 1, 3", [10], [6])
    a.valu("v_xor_b32 v10, v5, v10", [10], [5, 10])
    a.valu("v_lshlrev_b32 v10, 4, v10", [10], [10])
    a.valu("v_lshl_add_u32 v10, v6, 7, v10", [10], [6, 10])
    a.valu("v_lshl_add_u32 v10, v2, 12, v10", [10], [2, 10])
    a.valu("v_add_u32 v10, 0xc000, v10", [10], [10])
    for sp in range(4):
        a.valu(f"v_xor_b32 v{XA+sp}, {sp*32}, v10", [XA+sp], [10])
    a.valu("v_and_b32 v10, 1, v8", [10], [8])
    a.valu("v_lshl_or_b32 v10, v9, 1, v10", [10], [9, 10])
    a.valu("v_lshrrev_b32 v11, 1, v8", [11], [8])
    for u in range(2):
        a.valu(f"v_lshl_or_b32 v12, v5, 1, {u}", [12], [5])
        a.valu("v_xor_b32 v13, v10, v12", [13], [10, 12])
        a.valu("v_lshlrev_b32 v13, 4, v13", [13], [13])
        a.valu("v_lshl_add_u32 v13, v11, 3, v13", [13], [11, 13])
        a.valu("v_lshl_add_u32 v14, v12, 2, v7", [14], [12, 7])
        a.valu("v_lshl_add_u32 v13, v14, 8, v13", [13], [14, 13])
        a.valu("v_lshl_add_u32 v13, v7, 6, v13", [13], [7, 13])
        for t in range(4):
            a.valu(f"v_xor_b32 v{WA+2*t+u}, {t*64}, v13", [WA+2*t+u], [13])
    a.valu("v_lshlrev_b32 v10, 4, v1", [10], [1])
    a.valu(f"v_lshl_add_u32 v{VQ}, v2, 13, v10", [VQ], [2, 10])
    a.salu("s_lshl_b32 s26, s24, 11")
    a.salu("s_lshl_b32 s27, s24, 16")
    a.salu("s_lshl_b32 s28, s24, 12")
    a.salu("s_add_u32 s28, s28, 0xc000")
    a.salu("s_mul_i32 s25, s24, 40960")
    a.salu("s_mov_b32 s92, 0")
    a.salu("s_lshl_b32 s93, s37, 8")

    lq = a.newlabel("QL")
    a.nop(4)
    a.label(lq)
    a.salu("s_sub_u32 s30, 5242880, s93")
    srd_from(a, 12, "s46", "s47", "s93", "s30")

    def issue_W(s_):
        buf = s_ % 6
        a.salu(f"s_add_u32 m0, s26, {buf*8192}", m0=True)
        a.salu(f"s_add_u32 s29, s27, {s_*32*8192}")
        for jj in range(2):
            a.vmem_dma(f"buffer_load_dwordx4 v{VW+jj}, s[12:15], s29 offen offset:{jj*1024} lds", [VW+jj], tag=('W', s_))
    def issue_X(c):
        a.salu(f"s_add_u32 m0, s28, {(c%2)*16384}", m0=True)
        a.salu(f"s_add_u32 s29, s25, {c*128}")
        for jj in range(4):
            a.vmem_dma(f"buffer_load_dwordx4 v{VX+jj}, s[4:7], s29 offen offset:{jj*1024} lds", [VX+jj], tag=('X', c))
    def read_X(c):
        a.wait_vm(('X', c))
        for sp in range(4):
            d = XF + 16*(c % 2) + 4*sp
            a.ds_read(f"ds_read_b128 {vr(d,4)}, v{XA+sp} offset:{(c%2)*16384}", range(d, d+4), [XA+sp], tag=('xf', c))

    issue_X(0); issue_W(0); issue_W(1); issue_X(1)
    for s_ in range(2, 6): issue_W(s_)
    read_X(0)
    jobs = []
    for ks in range(40):
        s_ = ks // 2; sp2 = ks % 2; c = ks // 4; sp = ks % 4
        for t in range(4):
            def rd(buf, tag, s_=s_, sp2=sp2, t=t):
                for u in range(2):
                    d = FB + 4*buf + 2*u
                    a.ds_read(f"ds_read_b64_tr_b16 {vr(d,2)}, v{WA+2*t+u} offset:{(s_%6)*8192+sp2*4096}", [d, d+1], [WA+2*t+u], tag=tag)
            def mm(buf, ks=ks, t=t, c=c, sp=sp):
                a.mfma('32', OA+16*t, FB+4*buf, XF+16*(c % 2)+4*sp, None if ks == 0 else OA+16*t)
            jobs.append((rd, mm))
    def hook(j):
        if j % 8 == 0:
            s_ = j // 8
            a.wait_vm(('W', s_))
            a.barrier()
            if s_ >= 2 and s_ + 4 < 20: issue_W(s_ + 4)
        if j % 16 == 8:
            c = j // 16
            if c + 2 < 10: issue_X(c + 2)
            if c + 1 < 10: read_X(c + 1)
    a.wait_lg(('xf', 0))
    pipeline(a, jobs, 4, NB, hook)
    for s_ in range(8):
        t = s_ >> 1
        for ii in range(4):
            r = OA + 16*t + 8*(s_ & 1) + 2*ii
            a.valu(f"v_cvt_pk_bf16_f32 v{QF+4*s_+ii}, v{r}, v{r+1}", [QF+4*s_+ii], [r, r+1])
    a.salu("s_lshl_b32 s29, s92, 17")
    for s_ in range(8):
        if s_ == 4:
            a.salu("s_add_u32 s29, s29, 4096")
        a.vmem_store(f"buffer_store_dwordx4 {vr(QF+4*s_,4)}, v{VQ}, s[16:19], s29 offen offset:{(s_%4)*1024} sc1", [VQ], range(QF+4*s_, QF+4*s_+4), tag='Q')
    get_nonce(a, VP)
    a.barrier()
    a.salu("s_lshl_b32 s29, s92, 2"); a.salu("s_add_u32 s29, s29, s39"); a.salu("s_lshl_b32 s29, s29, 6")
    a.valu(f"v_mov_b32 v{VP}, s94", [VP], [], ssrc=['s94'])
    a.vmem_store(f"buffer_store_dword v{VP}, v15, s[8:11], s29 offen sc1", [15], [VP], tag='F')
    st(1)
    a.salu("s_add_u32 s92, s92, 1")
    a.salu("s_add_u32 s93, s93, 1024")
    a.salu("s_cmp_lt_u32 s92, 2")
    a.wait_vm_all()
    a.salu("s_cmp_lt_u32 s92, 2")
    a.salu(f"s_cbranch_scc1 {lq}")
    a.nop(4)

    a.salu("s_bfe_u32 s34, s31, 0x10001")
    a.salu("s_and_b32 s35, s31, 1")
    a.salu("s_and_b32 s36, s32, 7")
    a.salu("s_lshl_b32 s34, s34, 3")
    a.salu("s_add_u32 s34, s34, s36")
    a.salu("s_lshr_b32 s36, s32, 3")
    a.salu("s_lshl_b32 s35, s35, 2")
    a.salu("s_add_u32 s35, s35, s36")
    a.salu("s_lshl_b32 s38, s33, 3"); a.salu("s_add_u32 s38, s38, s35")
    a.salu("s_mul_i32 s29, s35, 160")
    a.salu("s_sub_u32 s30, 5242880, s29")
    srd_from(a, 4, "s74", "s75", "s29", "s30")
    a.salu("s_mul_i32 s29, s38, 655360")
    srd_from(a, 12, "s72", "s73", "s29", 655360, WOP_OFF)
    a.salu("s_lshl_b32 s29, s33, 4"); a.salu("s_add_u32 s29, s29, s34"); a.salu("s_lshl_b32 s29, s29, 19")
    srd_from(a, 16, "s72", "s73", "s29", 524288, OWS_OFF)
    a.salu("s_mul_i32 s29, s34, 163840")
    a.salu("s_mul_i32 s30, s33, 1280"); a.salu("s_add_u32 s29, s29, s30")
    a.salu("s_mul_i32 s30, s35, 160"); a.salu("s_add_u32 s29, s29, s30")
    a.salu("s_sub_u32 s30, 2621440, s29")
    srd_from(a, 20, "s68", "s69", "s29", "s30")

    ACC, RING = 16, 96
    VWO, TA, VL16, VL16B, VOF, VST, VFL = 240, 245, 246, 247, 248, 252, 253
    a.salu("s_mov_b32 s30, 0x1999999a")
    for jj in range(5):
        a.valu(f"v_add_u32 v10, {64*jj}, v1", [10], [1])
        a.valu("v_mul_hi_u32 v11, v10, s30", [11], [10])
        a.valu("v_mul_u32_u24 v12, 10, v11", [12], [11])
        a.valu("v_sub_u32 v12, v10, v12", [12], [10, 12])
        a.valu("v_mul_u32_u24 v11, 0x500, v11", [11], [11])
        a.valu(f"v_lshl_add_u32 v{VWO+jj}, v12, 4, v11", [VWO+jj], [12, 11])
        if 0 < jj < 4:
            a.valu(f"v_subrev_u32 v{VWO+jj}, {1024*jj}, v{VWO+jj}", [VWO+jj], [VWO+jj])
    a.valu(f"v_lshlrev_b32 v{VL16}, 4, v1", [VL16], [1])
    a.valu(f"v_add_u32 v{VL16B}, 0x1000, v{VL16}", [VL16B], [VL16])
    for qt in range(4):
        a.valu(f"v_add_u32 v{VOF+qt}, {qt*131072}, v{VL16}", [VOF+qt], [VL16])
    a.salu("s_mul_i32 s27, s24, 20480")
    a.valu("v_lshl_add_u32 v10, v3, 2, v7", [10], [3, 7])
    a.valu("v_mul_u32_u24 v10, 160, v10", [10], [10])
    a.valu("v_lshl_add_u32 v10, v8, 3, v10", [10], [8, 10])
    a.valu(f"v_add_u32 v{TA}, s27, v10", [TA], [10])
    a.salu("s_lshl_b32 s26, s34, 3"); a.salu("s_lshl_b32 s29, s24, 1"); a.salu("s_add_u32 s26, s26, s29")
    a.barrier()
    for e in range(2):
        a.salu(f"s_add_u32 m0, s27, {e*5120}", m0=True)
        a.salu(f"s_add_u32 s29, s26, {e}")
        a.salu("s_mul_i32 s29, s29, 40960")
        for jj in range(4):
            a.vmem_dma(f"buffer_load_dwordx4 v{VWO+jj}, s[4:7], s29 offen offset:{jj*1024} lds", [VWO+jj], tag=('pk', e))
        a.salu(f"s_add_u32 m0, s27, {e*5120+4096}", m0=True)
        a.salu("s_nop 0")
        a.vmem_dma(f"buffer_load_dwordx4 v{VWO+4}, s[4:7], s29 offen lds", [VWO+4], tag=('pk', e))
    for e in range(2):
        a.wait_vm(('pk', e))
        for nt_ in range(5):
            for u in range(2):
                d = RING + 20*e + 4*nt_ + 2*u
                a.ds_read(f"ds_read_b64_tr_b16 {vr(d,2)}, v{TA} offset:{e*5120+u*2560+nt_*32}", [d, d+1], [TA], tag=('pr', e))
        a.wait_lg_all()
        a.salu(f"s_add_u32 s29, s26, {e}")
        a.salu("s_mul_i32 s29, s29, 5120")
        for nt_ in range(5):
            d = RING + 20*e + 4*nt_
            if nt_ < 4:
                a.vmem_store(f"buffer_store_dwordx4 {vr(d,4)}, v{VL16}, s[12:15], s29 offen offset:{nt_*1024} sc1", [VL16], range(d, d+4), tag='pks')
            else:
                a.vmem_store(f"buffer_store_dwordx4 {vr(d,4)}, v{VL16B}, s[12:15], s29 offen sc1", [VL16B], range(d, d+4), tag='pks')
    a.wait_vm_all()
    a.barrier()
    a.salu("s_lshl_b32 s29, s38, 7"); a.salu("s_lshl_b32 s30, s34, 2"); a.salu("s_add_u32 s29, s29, s30")
    a.salu(f"s_add_u32 s29, s29, {FW_OFF}")
    a.valu(f"v_mov_b32 v{VP}, s94", [VP], [])
    a.vmem_store(f"buffer_store_dword v{VP}, v15, s[8:11], s29 offen sc1", [15], [VP], tag='F')
    st(2)
    a.valu(f"v_lshlrev_b32 v{VFL}, 2, v4", [VFL], [4])
    a.salu("s_lshl_b32 s29, s38, 7"); a.salu(f"s_add_u32 s29, s29, {FW_OFF}")
    spin(a, VP, VFL, "s[8:11]", "s29", "s94")
    st(3)
    a.valu(f"v_lshl_add_u32 v10, v2, 2, v8", [10], [2, 8])
    a.valu(f"v_lshlrev_b32 v{VFL}, 2, v10", [VFL], [10])
    a.salu("s_lshr_b32 s29, s34, 1"); a.salu("s_lshl_b32 s30, s33, 3"); a.salu("s_add_u32 s29, s29, s30")
    a.salu("s_lshl_b32 s25, s29, 8"); a.salu(f"s_add_u32 s25, s25, {FO_OFF}")
    a.salu("s_lshl_b32 s26, s24, 5")
    a.salu("s_mul_i32 s27, s26, 5120")
    a.salu("s_lshl_b32 s28, s26, 10")
    D = 4
    def issue_A(k):
        slot = k % D
        a.salu(f"s_add_u32 s29, s27, {k*5120}")
        for nt_ in range(5):
            d = RING + 36*slot + 4*nt_
            if nt_ < 4:
                a.vmem_load(f"buffer_load_dwordx4 {vr(d,4)}, v{VL16}, s[12:15], s29 offen offset:{nt_*1024} sc1", range(d, d+4), [VL16], tag=('A', k))
            else:
                a.vmem_load(f"buffer_load_dwordx4 {vr(d,4)}, v{VL16B}, s[12:15], s29 offen sc1", range(d, d+4), [VL16B], tag=('A', k))
    def issue_B(k):
        slot = k % D
        a.salu(f"s_add_u32 s30, s28, {k*1024}")
        for qt in range(4):
            d = RING + 36*slot + 20 + 4*qt
            a.vmem_load(f"buffer_load_dwordx4 {vr(d,4)}, v{VOF+qt}, s[16:19], s30 offen sc1", range(d, d+4), [VOF+qt], tag=('B', k))
    for rnd in range(2):
        k0 = 16 * rnd
        for k in range(k0, k0 + D): issue_A(k)
        if rnd == 1: a.salu("s_add_u32 s25, s25, 128")
        spin(a, VP, VFL, "s[8:11]", "s25", "s94")
        st(4 + 2*rnd)
        for k in range(k0, k0 + D): issue_B(k)
        for k in range(k0, k0 + 16):
            slot = k % D
            a.wait_vm(('B', k))
            for nt_ in range(5):
                for qt in range(4):
                    d = ACC + 4*(nt_*4 + qt)
                    a.mfma('16', d, RING + 36*slot + 4*nt_, RING + 36*slot + 20 + 4*qt, None if k == 0 else d)
            if k + D < k0 + 16:
                issue_A(k + D); issue_B(k + D)
        st(5 + 2*rnd)
    a.salu("s_mul_i32 s27, s24, 20480")
    a.valu(f"v_add_u32 v11, s27, v{VL16}", [11], [VL16])
    for tile in range(20):
        d = ACC + 4*tile
        a.ds_write(f"ds_write_b128 v11, {vr(d,4)} offset:{tile*1024}", [11] + list(range(d, d+4)))
        if len(a.lgq) >= 12: a.wait_lg_all()
    a.wait_lg_all()
    a.barrier()
    a.salu("s_lshl_b32 s29, s24, 10")
    a.valu(f"v_add_u32 v11, s29, v{VL16}", [11], [VL16])
    a.valu(f"v_add_u32 v12, 0xa000, v11", [12], [11])
    for nt_ in range(5):
        for src in range(4):
            d = RING + 16*nt_ + 4*src
            ar = 11 if src < 2 else 12
            a.ds_read(f"ds_read_b128 {vr(d,4)}, v{ar} offset:{(src%2)*20480 + nt_*4096}", range(d, d+4), [ar], tag=('R', nt_))
        if nt_ == 2: a.wait_lg_all()
    a.wait_lg_all()
    a.valu("v_lshl_add_u32 v10, v2, 4, v4", [10], [2, 4])
    a.valu("v_mul_u32_u24 v10, 0xa00, v10", [10], [10])
    a.valu(f"v_lshl_add_u32 v{VST}, v3, 3, v10", [VST], [3, 10])
    for nt_ in range(5):
        d = RING + 16*nt_
        for k in range(4):
            a.valu(f"v_add_f32 v{d+k}, v{d+k}, v{d+4+k}", [d+k], [d+k, d+4+k])
            a.valu(f"v_add_f32 v{d+8+k}, v{d+8+k}, v{d+12+k}", [d+8+k], [d+8+k, d+12+k])
        for k in range(4):
            a.valu(f"v_add_f32 v{d+k}, v{d+k}, v{d+8+k}", [d+k], [d+k, d+8+k])
        a.valu(f"v_cvt_pk_bf16_f32 v{d+4}, v{d}, v{d+1}", [d+4], [d, d+1])
        a.valu(f"v_cvt_pk_bf16_f32 v{d+5}, v{d+2}, v{d+3}", [d+5], [d+2, d+3])
        a.vmem_store(f"buffer_store_dwordx2 {vr(d+4,2)}, v{VST}, s[20:23], 0 offen offset:{nt_*32}", [VST], [d+4, d+5], tag='st')
    st(8)
    a.salu("s_endpgm")

def gen_S(a):
    QFS = [16, 48]
    OA, SS, PP, FB = 80, 144, 176, 192
    KA, VA, VKV = 216, 224, 232
    M, L, AL, MC, T0, T1, T2, T3 = 236, 237, 238, 240, 241, 242, 243, 244
    VO, VQ, VP, VT = 245, 246, 247, 248
    NB = 6
    SLOT = 16384
    a.label("L_stream")
    a.salu("s_setprio 3")
    st = Stamper(a, VT, 15)
    st.setup()
    st(0)
    a.salu(f"s_mov_b32 s30, 0x{f32bits(CSCALE):08x}")
    a.salu("s_lshl_b32 s29, s35, 5"); a.salu("s_add_u32 s29, s29, s37"); a.salu("s_lshl_b32 s29, s29, 17")
    srd_from(a, 12, "s42", "s43", "s29", 5 * 131072)
    srd_from(a, 16, "s44", "s45", "s29", 5 * 131072)
    a.salu("s_lshl_b32 s29, s38, 20")
    srd_from(a, 20, "s72", "s73", "s29", 1 << 20, OWS_OFF)
    a.salu("s_lshl_b32 s29, s39, 15")
    srd_from(a, 4, "s72", "s73", "s29", 5 * 32768, QWS_OFF)
    a.salu("s_lshl_b32 s27, s24, 12")
    for jj in range(4):
        a.valu(f"v_lshl_or_b32 v10, v3, 2, {jj}", [10], [3])
        a.valu("v_xor_b32 v10, v4, v10", [10], [4, 10])
        a.valu("v_lshlrev_b32 v10, 4, v10", [10], [10])
        a.valu(f"v_lshl_add_u32 v{VKV+jj}, v3, 8, v10", [VKV+jj], [3, 10])
    nt = " nt" if KV_NT else ""
    def issue_KV(g):
        task, n = g >> 4, g & 15
        slot = g % 5
        srd = "s[12:15]" if n % 2 == 0 else "s[16:19]"
        a.salu(f"s_add_u32 m0, s27, {slot*SLOT}", m0=True)
        a.salu(f"s_add_u32 s29, s27, {task*4*131072 + (n//2)*16384}")
        for jj in range(4):
            a.vmem_dma(f"buffer_load_dwordx4 v{VKV+jj}, {srd}, s29 offen offset:{jj*1024}{nt} lds", [VKV+jj], tag=('KV', g))
    for g in range(5): issue_KV(g)
    a.valu("v_and_b32 v10, 3, v6", [10], [6])
    a.valu("v_bfe_u32 v11, v6, 2, 2", [11], [6])
    a.valu("v_lshl_or_b32 v10, v10, 2, v11", [10], [10, 11])
    a.valu("v_xor_b32 v10, v5, v10", [10], [5, 10])
    a.valu("v_lshlrev_b32 v10, 4, v10", [10], [10])
    a.valu("v_lshl_add_u32 v10, v6, 8, v10", [10], [6, 10])
    for s_ in range(8):
        a.valu(f"v_xor_b32 v{KA+s_}, {s_*32}, v10", [KA+s_], [10])
    a.valu("v_lshrrev_b32 v10, 1, v8", [10], [8])
    a.valu("v_lshl_or_b32 v10, v9, 1, v10", [10], [9, 10])
    a.valu("v_and_b32 v11, 1, v8", [11], [8])
    for u in range(2):
        a.valu(f"v_or_b32 v12, {2*u}, v5", [12], [5])
        a.valu("v_xor_b32 v13, v10, v12", [13], [10, 12])
        a.valu("v_lshlrev_b32 v13, 4, v13", [13], [13])
        a.valu("v_lshl_add_u32 v13, v11, 3, v13", [13], [11, 13])
        a.valu("v_lshl_add_u32 v14, v12, 2, v7", [14], [12, 7])
        a.valu("v_lshl_add_u32 v13, v14, 8, v13", [13], [14, 13])
        a.valu("v_lshl_add_u32 v13, v7, 6, v13", [13], [7, 13])
        for t in range(4):
            a.valu(f"v_xor_b32 v{VA+2*t+u}, {t*64}, v13", [VA+2*t+u], [13])
    a.valu("v_lshl_add_u32 v10, v2, 1, v9", [10], [2, 9])
    a.valu("v_lshlrev_b32 v10, 17, v10", [10], [10])
    a.valu("v_lshl_add_u32 v11, v5, 4, v4", [11], [5, 4])
    a.valu(f"v_lshl_add_u32 v{VO}, v11, 4, v10", [VO], [11, 10])
    a.valu("v_lshlrev_b32 v10, 4, v1", [10], [1])
    a.valu(f"v_lshl_add_u32 v{VQ}, v2, 13, v10", [VQ], [2, 10])
    a.salu("s_lshl_b32 s25, s39, 6")
    a.salu("s_lshl_b32 s26, s38, 8"); a.salu("s_lshl_b32 s29, s34, 4"); a.salu("s_add_u32 s26, s26, s29")
    a.salu("s_lshl_b32 s29, s36, 2"); a.salu("s_add_u32 s26, s26, s29"); a.salu(f"s_add_u32 s26, s26, {FO_OFF}")
    get_nonce(a, VP)
    st(1)
    spin(a, VP, 15, "s[8:11]", "s25", "s94")
    st(2)
    def load_Q(task, srd="s[4:7]", sc=" sc1"):
        qf = QFS[task]
        a.salu(f"s_mov_b32 s29, {task*4*32768}")
        a.salu(f"s_mov_b32 s28, {task*4*32768+4096}")
        for s_ in range(8):
            so = "s29" if s_ < 4 else "s28"
            a.vmem_load(f"buffer_load_dwordx4 {vr(qf+4*s_,4)}, v{VQ}, {srd}, {so} offen offset:{(s_%4)*1024}{sc}", range(qf+4*s_, qf+4*s_+4), [VQ], tag=('Q', task))
    load_Q(0)
    a.wait_vm(('Q', 0))

    base = {'K': 0, 'V': 0}
    def rebase(which, slot):
        regs = range(KA, KA+8) if which == 'K' else range(VA, VA+8)
        need = base[which]
        if slot == 4: need = SLOT
        if slot == 0: need = 0
        if need != base[which]:
            for r in regs:
                if need > base[which]:
                    a.valu(f"v_add_u32 v{r}, {need-base[which]}, v{r}", [r], [r])
                else:
                    a.valu(f"v_subrev_u32 v{r}, {base[which]-need}, v{r}", [r], [r])
            base[which] = need
        return slot * SLOT - base[which]

    for g in range(32):
        task, n = g >> 4, g & 15
        QF = QFS[task]
        slot = g % 5
        T = n // 2
        off = rebase('K' if n % 2 == 0 else 'V', slot)
        if g == 16:
            ls = a.newlabel("QS")
            a.salu("s_cmp_eq_u32 s93, 0")
            a.salu(f"s_cbranch_scc1 {ls}")
            saved = list(a.vmq)
            a.salu("s_add_u32 s25, s25, 256")
            spin(a, VP, 15, "s[8:11]", "s25", "s94")
            load_Q(1)
            a.wait_vm_all()
            a.label(ls)
            a.vmq[:] = saved
            a.nop(2)
            a.wait_vm(('Q', 1))
        a.wait_vm(('KV', g))
        a.barrier()
        if g >= 1 and g + 4 < 32: issue_KV(g + 4)
        if g == 6:
            a.salu("s_add_u32 s29, s25, 256")
            a.vmem_load(f"buffer_load_dword v{VP}, v15, s[8:11], s29 offen sc1", [VP], [15], tag='poll')
        if g == 11:
            assert 'poll' not in a.vmq
            a.valu(f"v_readfirstlane_b32 s93, v{VP}", [], [VP], sdst=['s93'], kind='readlane')
            a.nop(4)
            lr, lj = a.newlabel("QR"), a.newlabel("QJ")
            a.salu("s_cmp_eq_u32 s93, s94")
            a.salu(f"s_cbranch_scc1 {lr}")
            saved = list(a.vmq); t0 = a.t
            a.salu("s_mov_b32 s93, 1")
            load_Q(1, srd="s[12:15]", sc="")
            a.salu(f"s_branch {lj}")
            a.vmq[:] = saved
            a.label(lr)
            a.salu("s_mov_b32 s93, 0")
            load_Q(1)
            a.label(lj)
            a.t = t0 + 4
        if g == 20:
            assert 'O' not in a.vmq
            a.valu(f"v_mov_b32 v{VP}, s94", [VP], [])
            a.vmem_store(f"buffer_store_dword v{VP}, v15, s[8:11], s26 offen sc1", [15], [VP], tag='F')
        st(3 + g)
        jobs = []
        if n % 2 == 0:
            for kt in range(2):
                for s_ in range(8):
                    def rd(buf, tag, kt=kt, s_=s_):
                        d = FB + 4*buf
                        a.ds_read(f"ds_read_b128 {vr(d,4)}, v{KA+s_} offset:{off+kt*8192}", range(d, d+4), [KA+s_], tag=tag)
                    def mm(buf, kt=kt, s_=s_, QF=QF):
                        a.mfma('32', SS+16*kt, FB+4*buf, QF+4*s_, None if s_ == 0 else SS+16*kt)
                    jobs.append((rd, mm))
            pipeline(a, jobs, 5, NB)
            for c_, tr in ((0, T0), (16, T1)):
                a.valu(f"v_max3_f32 v{tr}, v{SS+c_}, v{SS+c_+1}, v{SS+c_+2}", [tr], [SS+c_, SS+c_+1, SS+c_+2])
                for k in range(3, 15, 2):
                    a.valu(f"v_max3_f32 v{tr}, v{tr}, v{SS+c_+k}, v{SS+c_+k+1}", [tr], [tr, SS+c_+k, SS+c_+k+1])
            a.valu(f"v_max3_f32 v{T0}, v{T0}, v{T1}, v{SS+15}", [T0], [T0, T1, SS+15])
            a.valu(f"v_max_f32 v{T0}, v{T0}, v{SS+31}", [T0], [T0, SS+31])
            a.valu(f"v_mov_b32 v{T1}, v{T0}", [T1], [T0])
            a.valu(f"v_permlane32_swap_b32 v{T0}, v{T1}", [T0, T1], [T0, T1], kind='permlane')
            if T == 0:
                a.valu(f"v_max_f32 v{M}, v{T0}, v{T1}", [M], [T0, T1])
            else:
                a.valu(f"v_max3_f32 v{T2}, v{T0}, v{T1}, v{M}", [T2], [T0, T1, M])
                a.valu(f"v_sub_f32 v{T3}, v{M}, v{T2}", [T3], [M, T2])
                a.valu(f"v_mul_f32 v{T3}, s30, v{T3}", [T3], [T3])
                a.valu(f"v_exp_f32 v{AL}, v{T3}", [AL], [T3], trans=True)
                a.valu(f"v_mov_b32 v{M}, v{T2}", [M], [T2])
            a.valu(f"v_mul_f32 v{MC}, s30, v{M}", [MC], [M])
            for i in range(32):
                a.valu(f"v_fma_f32 v{SS+i}, v{SS+i}, s30, -v{MC}", [SS+i], [SS+i, MC])
            for i in range(32):
                a.valu(f"v_exp_f32 v{SS+i}, v{SS+i}", [SS+i], [SS+i], trans=True)
            for c_, tr in ((0, T0), (8, T1), (16, T2), (24, T3)):
                a.valu(f"v_add_f32 v{tr}, v{SS+c_}, v{SS+c_+1}", [tr], [SS+c_, SS+c_+1])
            for k in range(2, 8):
                for c_, tr in ((0, T0), (8, T1), (16, T2), (24, T3)):
                    a.valu(f"v_add_f32 v{tr}, v{tr}, v{SS+c_+k}", [tr], [tr, SS+c_+k])
            a.valu(f"v_add_f32 v{T0}, v{T0}, v{T1}", [T0], [T0, T1])
            a.valu(f"v_add_f32 v{T2}, v{T2}, v{T3}", [T2], [T2, T3])
            if T == 0:
                a.valu(f"v_add_f32 v{L}, v{T0}, v{T2}", [L], [T0, T2])
            else:
                a.valu(f"v_add_f32 v{T0}, v{T0}, v{T2}", [T0], [T0, T2])
                a.valu(f"v_fma_f32 v{L}, v{L}, v{AL}, v{T0}", [L], [L, AL, T0])
            for i in range(16):
                a.valu(f"v_cvt_pk_bf16_f32 v{PP+i}, v{SS+2*i}, v{SS+2*i+1}", [PP+i], [SS+2*i, SS+2*i+1])
            if T > 0:
                for i in range(0, 64, 2):
                    a.valu(f"v_pk_mul_f32 {vr(OA+i,2)}, {vr(OA+i,2)}, {vr(AL,2)} op_sel_hi:[1,0]", [OA+i, OA+i+1], [OA+i, OA+i+1, AL])
        else:
            for j in range(4):
                for t in range(4):
                    def rd(buf, tag, j=j, t=t):
                        for u in range(2):
                            d = FB + 4*buf + 2*u
                            a.ds_read(f"ds_read_b64_tr_b16 {vr(d,2)}, v{VA+2*t+u} offset:{off+j*4096}", [d, d+1], [VA+2*t+u], tag=tag)
                    def mm(buf, j=j, t=t, T=T):
                        first = (T == 0 and j == 0)
                        a.mfma('32', OA+16*t, FB+4*buf, PP+4*j, None if first else OA+16*t)
                    jobs.append((rd, mm))
            pipeline(a, jobs, 4, NB)
        if n == 15:
            a.valu(f"v_mov_b32 v{T0}, v{L}", [T0], [L])
            a.valu(f"v_mov_b32 v{T1}, v{L}", [T1], [L])
            a.valu(f"v_permlane32_swap_b32 v{T0}, v{T1}", [T0, T1], [T0, T1], kind='permlane')
            a.valu(f"v_add_f32 v{T0}, v{T0}, v{T1}", [T0], [T0, T1])
            a.valu(f"v_rcp_f32 v{AL}, v{T0}", [AL], [T0], trans=True)
            a.salu(f"s_add_u32 s29, s37, {4*task}")
            a.salu("s_lshl_b32 s29, s29, 12")
            for t in range(4):
                for i in range(0, 16, 2):
                    r = OA + 16*t + i
                    a.valu(f"v_pk_mul_f32 {vr(r,2)}, {vr(r,2)}, {vr(AL,2)} op_sel_hi:[1,0]", [r, r+1], [r, r+1, AL])
                for piece in range(2):
                    d = SS + 8*t + 4*piece
                    for k, rr in enumerate((4*piece, 4*piece+2, 8+4*piece, 8+4*piece+2)):
                        r = OA + 16*t + rr
                        a.valu(f"v_cvt_pk_bf16_f32 v{d+k}, v{r}, v{r+1}", [d+k], [r, r+1])
                    a.vmem_store(f"buffer_store_dwordx4 {vr(d,4)}, v{VO}, s[20:23], s29 offen offset:{t*1024+piece*512} sc1", [VO], range(d, d+4), tag='O')
    a.wait_vm_all()
    a.barrier()
    a.salu("s_add_u32 s26, s26, 128")
    a.valu(f"v_mov_b32 v{VP}, s94", [VP], [])
    a.vmem_store(f"buffer_store_dword v{VP}, v15, s[8:11], s26 offen sc1", [15], [VP], tag='F')
    st(35)
    a.label("L_done")
    a.salu("s_endpgm")

def main(out):
    hdr = f"""; Generated by gen/gen_v2.py (hand-written generator).
; @launch grid=(512,1,1) block=(256,1,1) lds=81920
.amdgcn_target "amdgcn-amd-amdhsa--gfx950"
.text
.globl {KNAME}
.p2align 8
.type {KNAME},@function
"""
    a = Asm()
    common_prologue(a)
    import copy
    save = (a.t, dict(a.w_valu), dict(a.w_sgpr_valu))
    gen_G(a)
    a.t = save[0]; a.w_valu = save[1]; a.w_sgpr_valu = save[2]; a.w_trans = {}; a.w_mfma = {}; a.rc_mfma = {}; a.st_data = {}; a.vmq = []; a.lgq = []
    gen_S(a)
    tail = f""".section .rodata,"a"
.p2align 6
.amdhsa_kernel {KNAME}
  .amdhsa_next_free_vgpr 256
  .amdhsa_next_free_sgpr 102
  .amdhsa_accum_offset 256
  .amdhsa_group_segment_fixed_size 0
  .amdhsa_kernarg_size 104
  .amdhsa_user_sgpr_count 2
  .amdhsa_user_sgpr_kernarg_segment_ptr 1
  .amdhsa_system_sgpr_workgroup_id_x 1
.end_amdhsa_kernel
"""
    open(out, "w").write(hdr + a.text() + tail)

if __name__ == "__main__":
    main(sys.argv[1] if len(sys.argv) > 1 else f"cdna_kernels/{NAME}.s")
```

```python
import sys, struct, os, math
sys.path.insert(0, 'gen')
from asmlib import *

NAME = "concat_heads__gqa_block_cached__mha_block_cached__near_ridge"
KNAME = NAME + "_kernel"
CSCALE = (128 ** -0.5) * math.log2(math.e)
def f32bits(x): return struct.unpack('<I', struct.pack('<f', x))[0]

KV_NT = int(os.environ.get("KV_NT", "1"))
STAMP = int(os.environ.get("STAMP", "0"))
TOUCH = int(os.environ.get("TOUCH", "1"))
SDELAY = int(os.environ.get("SDELAY", "1"))
SPIN_LIMIT = 1 << 21
OWS_OFF, QWS_OFF, WOP_OFF, FLG_OFF, STAMP_OFF = 0, 16 << 20, 32 << 20, 48 << 20, 64 << 20
FO_OFF, FW_OFF = 65536, 131072

def pipeline(a, jobs, PD, NB, hook=None):
    n = len(jobs)
    for i in range(-PD, n):
        if i + PD < n:
            if hook: hook(i + PD)
            jobs[i + PD][0]((i + PD) % NB, ('job', i + PD))
        if i >= 0:
            a.wait_lg(('job', i))
            jobs[i][1](i % NB)

def make_srd(a, d, lo, hi, size):
    a.salu(f"s_mov_b32 s{d}, {lo}")
    a.salu(f"s_and_b32 s{d+1}, {hi}, 0xffff")
    a.salu(f"s_mov_b32 s{d+2}, {size}")
    a.salu(f"s_mov_b32 s{d+3}, 0x00020000")

def srd_from(a, d, base_lo, base_hi, off_sreg, size, const_off=0):
    a.salu(f"s_add_u32 s{d}, {base_lo}, {off_sreg}")
    a.salu(f"s_addc_u32 s{d+1}, {base_hi}, 0")
    if const_off:
        a.salu(f"s_add_u32 s{d}, s{d}, {const_off}")
        a.salu(f"s_addc_u32 s{d+1}, s{d+1}, 0")
    a.salu(f"s_and_b32 s{d+1}, s{d+1}, 0xffff")
    a.salu(f"s_mov_b32 s{d+2}, {size}")
    a.salu(f"s_mov_b32 s{d+3}, 0x00020000")

def spin(a, vp, voff, srd, soff, cmp_with, want_equal=True):
    l, ld = a.newlabel("SP"), a.newlabel("SD")
    a.salu("s_mov_b32 s95, 0")
    a.nop(4)
    a.label(l)
    a.raw(f"    buffer_load_dword v{vp}, v{voff}, {srd}, {soff} offen sc1")
    a.raw("    s_waitcnt vmcnt(0)")
    a.raw(f"    v_cmp_{'ne' if want_equal else 'eq'}_u32 vcc, {cmp_with}, v{vp}")
    a.raw(f"    s_cbranch_vccz {ld}")
    a.raw("    s_add_u32 s95, s95, 1")
    a.raw(f"    s_cmp_gt_u32 s95, {SPIN_LIMIT}")
    a.raw(f"    s_cbranch_scc1 {ld}")
    a.raw("    s_sleep 2")
    a.raw(f"    s_branch {l}")
    a.label(ld)
    a.vmq.clear()
    a.nop(4)

class Stamper:
    def __init__(self, a, vtmp, vzero):
        self.a, self.vt, self.vz = a, vtmp, vzero
    def setup(self):
        a = self.a
        if not STAMP: return
        a.salu("s_mov_b32 s78, 0")
        srd_from(a, 80, "s72", "s73", "s78", 1 << 20, STAMP_OFF)
        a.salu("s_lshl_b32 s78, s2, 2"); a.salu("s_add_u32 s78, s78, s24"); a.salu("s_lshl_b32 s78, s78, 8")
    def __call__(self, idx, sreg="s78"):
        a = self.a
        if not STAMP: return
        a.wait_lg_all()
        if idx == 0:
            a.salu("s_getreg_b32 s90, hwreg(HW_REG_HW_ID)")
            a.salu("s_getreg_b32 s91, hwreg(HW_REG_XCC_ID)")
            a.salu("s_lshl_b32 s91, s91, 24")
            a.salu("s_and_b32 s90, s90, 0xffffff")
            a.salu("s_or_b32 s90, s90, s91")
            a.valu(f"v_mov_b32 v{self.vt}, s90", [self.vt], [])
            a.vmem_store(f"buffer_store_dword v{self.vt}, v{self.vz}, s[80:83], s78 offen offset:252", [self.vz], [self.vt], tag='stamp')
        a.salu("s_memrealtime s[90:91]")
        a.salu("s_waitcnt lgkmcnt(0)")
        a.valu(f"v_mov_b32 v{self.vt}, s90", [self.vt], [])
        a.vmem_store(f"buffer_store_dword v{self.vt}, v{self.vz}, s[80:83], {sreg} offen offset:{idx*4}", [self.vz], [self.vt], tag='stamp')

def common_prologue(a):
    a.label(KNAME)
    a.salu("s_cmp_ge_u32 s2, 512")
    a.salu("s_cbranch_scc1 L_done")
    a.salu("s_load_dwordx16 s[48:63], s[0:1], 0")
    a.salu("s_load_dwordx8 s[64:71], s[0:1], 64")
    a.salu("s_load_dwordx2 s[72:73], s[0:1], 96")
    a.salu("s_and_b32 s31, s2, 7")
    a.salu("s_bfe_u32 s32, s2, 0x50003")
    a.salu("s_lshr_b32 s33, s31, 2")
    a.salu("s_and_b32 s34, s31, 3")
    a.salu("s_and_b32 s35, s32, 7")
    a.salu("s_lshr_b32 s36, s32, 3")
    a.salu("s_lshl_b32 s37, s34, 3")
    a.salu("s_add_u32 s37, s37, s36")
    a.salu("s_lshl_b32 s38, s33, 3")
    a.salu("s_add_u32 s38, s38, s35")
    a.salu("s_lshl_b32 s39, s38, 5")
    a.salu("s_add_u32 s39, s39, s37")
    a.valu("v_and_b32 v1, 63, v0", [1], [0])
    a.valu("v_lshrrev_b32 v2, 6, v0", [2], [0])
    a.valu("v_readfirstlane_b32 s24, v2", [], [2], sdst=['s24'], kind='readlane')
    a.valu("v_lshrrev_b32 v3, 4, v1", [3], [1])
    a.valu("v_and_b32 v4, 15, v1", [4], [1])
    a.valu("v_lshrrev_b32 v5, 5, v1", [5], [1])
    a.valu("v_and_b32 v6, 31, v1", [6], [1])
    a.valu("v_bfe_u32 v7, v1, 2, 2", [7], [1])
    a.valu("v_and_b32 v8, 3, v1", [8], [1])
    a.valu("v_and_b32 v9, 1, v3", [9], [3])
    a.valu("v_mov_b32 v15, 0", [15], [])
    a.salu("s_waitcnt lgkmcnt(0)")
    a.salu("s_cmp_eq_u32 s33, 1")
    a.salu("s_cselect_b64 s[40:41], s[58:59], s[48:49]")
    a.salu("s_cselect_b64 s[42:43], s[60:61], s[50:51]")
    a.salu("s_cselect_b64 s[44:45], s[62:63], s[52:53]")
    a.salu("s_cselect_b64 s[46:47], s[64:65], s[54:55]")
    a.salu("s_cselect_b64 s[74:75], s[66:67], s[56:57]")
    a.salu("s_mov_b32 s29, 0")
    srd_from(a, 8, "s72", "s73", "s29", 1 << 20, FLG_OFF)
    make_srd(a, 84, "s70", "s71", 256)
    a.salu("s_cmp_ge_u32 s2, 256")
    a.salu("s_cbranch_scc1 L_stream")

def get_nonce(a, vp):
    spin(a, vp, 15, "s[84:87]", "0", "0", want_equal=False)
    a.valu(f"v_readfirstlane_b32 s94, v{vp}", [], [vp], sdst=['s94'], kind='readlane')
    a.nop(5)

def gen_G(a):
    OA, FB, XF = 16, 80, 104
    WA, VW, VX, XA, VQ = 136, 144, 146, 150, 154
    QF = 160
    VP, VT = 14, 13
    NB = 6
    st = Stamper(a, VT, 15)
    st.setup()
    st(0)
    l0 = a.newlabel("NN")
    a.salu("s_or_b32 s29, s2, s24")
    a.salu("s_cmp_lg_u32 s29, 0")
    a.salu(f"s_cbranch_scc1 {l0}")
    a.salu("s_memrealtime s[90:91]")
    a.salu("s_waitcnt lgkmcnt(0)")
    a.salu("s_or_b32 s90, s90, 1")
    a.valu(f"v_mov_b32 v{VP}, s90", [VP], [])
    a.raw(f"    buffer_store_dword v{VP}, v15, s[84:87], 0 offen sc1")
    a.raw("    s_waitcnt vmcnt(0)")
    a.label(l0)
    a.nop(3)
    a.salu("s_mul_i32 s29, s35, 163840")
    srd_from(a, 4, "s40", "s41", "s29", 163840)
    a.salu("s_lshl_b32 s29, s39, 15")
    srd_from(a, 16, "s72", "s73", "s29", 5 * 32768, QWS_OFF)
    for jj in range(2):
        a.valu(f"v_lshl_or_b32 v10, v2, 1, {jj}", [10], [2])
        a.valu("v_and_b32 v10, 3, v10", [10], [10])
        a.valu("v_lshl_or_b32 v10, v3, 2, v10", [10], [3, 10])
        a.valu("v_xor_b32 v10, v4, v10", [10], [4, 10])
        a.valu("v_lshlrev_b32 v10, 4, v10", [10], [10])
        a.valu("v_lshl_add_u32 v10, v3, 13, v10", [10], [3, 10])
        a.valu(f"v_add_u32 v{VW+jj}, {jj*(4*8192-1024)}, v10", [VW+jj], [10])
    a.valu("v_lshrrev_b32 v11, 3, v1", [11], [1])
    a.valu("v_mul_u32_u24 v11, 0x500, v11", [11], [11])
    a.valu("v_and_b32 v12, 7, v1", [12], [1])
    for jj in range(4):
        a.valu(f"v_add_u32 v10, {(4*jj) & 7}, v3", [10], [3])
        a.valu("v_xor_b32 v10, v12, v10", [10], [12, 10])
        a.valu("v_lshl_add_u32 v10, v10, 4, v11", [10], [10, 11])
        a.valu(f"v_add_u32 v{VX+jj}, {jj*(8*1280-1024)}, v10", [VX+jj], [10])
    a.valu("v_bfe_u32 v10, v6, 1, 3", [10], [6])
    a.valu("v_xor_b32 v10, v5, v10", [10], [5, 10])
    a.valu("v_lshlrev_b32 v10, 4, v10", [10], [10])
    a.valu("v_lshl_add_u32 v10, v6, 7, v10", [10], [6, 10])
    a.valu("v_lshl_add_u32 v10, v2, 12, v10", [10], [2, 10])
    a.valu("v_add_u32 v10, 0xc000, v10", [10], [10])
    for sp in range(4):
        a.valu(f"v_xor_b32 v{XA+sp}, {sp*32}, v10", [XA+sp], [10])
    a.valu("v_and_b32 v10, 1, v8", [10], [8])
    a.valu("v_lshl_or_b32 v10, v9, 1, v10", [10], [9, 10])
    a.valu("v_lshrrev_b32 v11, 1, v8", [11], [8])
    for u in range(2):
        a.valu(f"v_lshl_or_b32 v12, v5, 1, {u}", [12], [5])
        a.valu("v_xor_b32 v13, v10, v12", [13], [10, 12])
        a.valu("v_lshlrev_b32 v13, 4, v13", [13], [13])
        a.valu("v_lshl_add_u32 v13, v11, 3, v13", [13], [11, 13])
        a.valu("v_lshl_add_u32 v14, v12, 2, v7", [14], [12, 7])
        a.valu("v_lshl_add_u32 v13, v14, 8, v13", [13], [14, 13])
        a.valu("v_lshl_add_u32 v13, v7, 6, v13", [13], [7, 13])
        for t in range(4):
            a.valu(f"v_xor_b32 v{WA+2*t+u}, {t*64}, v13", [WA+2*t+u], [13])
    a.valu("v_lshlrev_b32 v10, 4, v1", [10], [1])
    a.valu(f"v_lshl_add_u32 v{VQ}, v2, 13, v10", [VQ], [2, 10])
    a.salu("s_lshl_b32 s26, s24, 11")
    a.salu("s_lshl_b32 s27, s24, 16")
    a.salu("s_lshl_b32 s28, s24, 12")
    a.salu("s_add_u32 s28, s28, 0xc000")
    a.salu("s_mul_i32 s25, s24, 40960")
    a.salu("s_mov_b32 s92, 0")
    a.salu("s_lshl_b32 s93, s37, 8")

    lq = a.newlabel("QL")
    a.nop(4)
    a.label(lq)
    a.salu("s_sub_u32 s30, 5242880, s93")
    srd_from(a, 12, "s46", "s47", "s93", "s30")
    if STAMP:
        a.salu("s_mul_i32 s79, s92, 88"); a.salu("s_add_u32 s79, s79, s78")

    def issue_W(s_):
        buf = s_ % 6
        a.salu(f"s_add_u32 m0, s26, {buf*8192}", m0=True)
        a.salu(f"s_add_u32 s29, s27, {s_*32*8192}")
        for jj in range(2):
            a.vmem_dma(f"buffer_load_dwordx4 v{VW+jj}, s[12:15], s29 offen offset:{jj*1024} lds", [VW+jj], tag=('W', s_))
    def issue_X(c):
        a.salu(f"s_add_u32 m0, s28, {(c%2)*16384}", m0=True)
        a.salu(f"s_add_u32 s29, s25, {c*128}")
        for jj in range(4):
            a.vmem_dma(f"buffer_load_dwordx4 v{VX+jj}, s[4:7], s29 offen offset:{jj*1024} lds", [VX+jj], tag=('X', c))
    def read_X(c):
        a.wait_vm(('X', c))
        for sp in range(4):
            d = XF + 16*(c % 2) + 4*sp
            a.ds_read(f"ds_read_b128 {vr(d,4)}, v{XA+sp} offset:{(c%2)*16384}", range(d, d+4), [XA+sp], tag=('xf', c))

    issue_X(0); issue_W(0); issue_W(1); issue_X(1)
    for s_ in range(2, 6): issue_W(s_)
    a.salu("s_mul_i32 s29, s36, 40960")
    a.salu("s_mul_i32 s30, s24, 10240")
    a.salu("s_add_u32 s29, s29, s30")
    a.valu("v_lshlrev_b32 v10, 7, v1", [10], [1])
    a.valu("v_add_u32 v11, 0x2000, v10", [11], [10])
    a.valu("v_cmp_gt_u32 vcc, 16, v1", [], [1], sdst=['vcc'])
    a.valu("v_mov_b32 v12, 0x7fffffff", [12], [])
    a.valu("v_cndmask_b32 v11, v12, v11, vcc", [11], [11, 12], ssrc=['vcc'])
    if TOUCH:
        a.vmem_load(f"buffer_load_dword v{QF}, v10, s[4:7], s29 offen", [QF], [10], tag='pf')
        a.vmem_load(f"buffer_load_dword v{QF+1}, v11, s[4:7], s29 offen", [QF+1], [11], tag='pf')
    a.salu("s_mul_i32 s29, s35, 80"); a.salu("s_mul_i32 s30, s24, 20"); a.salu("s_add_u32 s29, s29, s30")
    a.salu("s_lshl_b32 s29, s29, 13")
    a.valu("v_lshrrev_b32 v10, 1, v1", [10], [1])
    a.valu("v_lshlrev_b32 v10, 13, v10", [10], [10])
    a.valu("v_and_b32 v11, 1, v1", [11], [1])
    a.valu("v_lshl_add_u32 v10, v11, 7, v10", [10], [11, 10])
    a.valu("v_cmp_gt_u32 vcc, 40, v1", [], [1], sdst=['vcc'])
    a.valu("v_cndmask_b32 v10, v12, v10, vcc", [10], [10, 12], ssrc=['vcc'])
    if TOUCH: a.vmem_load(f"buffer_load_dword v{QF+2}, v10, s[12:15], s29 offen", [QF+2], [10], tag='pf')
    def touch_next_head():
        a.salu("s_add_u32 s30, s29, 1024") if False else None
    read_X(0)
    jobs = []
    for ks in range(40):
        s_ = ks // 2; sp2 = ks % 2; c = ks // 4; sp = ks % 4
        for t in range(4):
            def rd(buf, tag, s_=s_, sp2=sp2, t=t):
                for u in range(2):
                    d = FB + 4*buf + 2*u
                    a.ds_read(f"ds_read_b64_tr_b16 {vr(d,2)}, v{WA+2*t+u} offset:{(s_%6)*8192+sp2*4096}", [d, d+1], [WA+2*t+u], tag=tag)
            def mm(buf, ks=ks, t=t, c=c, sp=sp):
                a.mfma('32', OA+16*t, FB+4*buf, XF+16*(c % 2)+4*sp, None if ks == 0 else OA+16*t)
            jobs.append((rd, mm))
    def hook(j):
        if j % 8 == 0:
            s_ = j // 8
            a.wait_vm(('W', s_))
            a.barrier()
            if s_ >= 2 and s_ + 4 < 20: issue_W(s_ + 4)
            if s_ == 10:
                a.salu("s_mul_i32 s29, s35, 80"); a.salu("s_mul_i32 s30, s24, 20"); a.salu("s_add_u32 s29, s29, s30")
                a.salu("s_lshl_b32 s29, s29, 13")
                a.salu("s_add_u32 s29, s29, 1024")
                a.vmem_load(f"buffer_load_dword v{QF+3}, v10, s[12:15], s29 offen", [QF+3], [10], tag='pf')
            st(10 + s_, "s79")
        if j % 16 == 8:
            c = j // 16
            if c + 2 < 10: issue_X(c + 2)
            if c + 1 < 10: read_X(c + 1)
    a.wait_lg(('xf', 0))
    pipeline(a, jobs, 4, NB, hook)
    for s_ in range(8):
        t = s_ >> 1
        for ii in range(4):
            r = OA + 16*t + 8*(s_ & 1) + 2*ii
            a.valu(f"v_cvt_pk_bf16_f32 v{QF+4*s_+ii}, v{r}, v{r+1}", [QF+4*s_+ii], [r, r+1])
    a.salu("s_lshl_b32 s29, s92, 17")
    for s_ in range(8):
        if s_ == 4:
            a.salu("s_add_u32 s29, s29, 4096")
        a.vmem_store(f"buffer_store_dwordx4 {vr(QF+4*s_,4)}, v{VQ}, s[16:19], s29 offen offset:{(s_%4)*1024} sc1", [VQ], range(QF+4*s_, QF+4*s_+4), tag='Q')
    st(30, "s79")
    get_nonce(a, VP)
    st(31, "s79")
    a.barrier()
    a.salu("s_lshl_b32 s29, s92, 2"); a.salu("s_add_u32 s29, s29, s39"); a.salu("s_lshl_b32 s29, s29, 6")
    a.valu(f"v_mov_b32 v{VP}, s94", [VP], [], ssrc=['s94'])
    a.vmem_store(f"buffer_store_dword v{VP}, v15, s[8:11], s29 offen sc1", [15], [VP], tag='F')
    st(1)
    a.salu("s_add_u32 s92, s92, 1")
    a.salu("s_add_u32 s93, s93, 1024")
    a.salu("s_cmp_lt_u32 s92, 2")
    a.wait_vm_all()
    a.salu("s_cmp_lt_u32 s92, 2")
    a.salu(f"s_cbranch_scc1 {lq}")
    a.nop(4)

    a.salu("s_bfe_u32 s34, s31, 0x10001")
    a.salu("s_and_b32 s35, s31, 1")
    a.salu("s_and_b32 s36, s32, 7")
    a.salu("s_lshl_b32 s34, s34, 3")
    a.salu("s_add_u32 s34, s34, s36")
    a.salu("s_lshr_b32 s36, s32, 3")
    a.salu("s_lshl_b32 s35, s35, 2")
    a.salu("s_add_u32 s35, s35, s36")
    a.salu("s_lshl_b32 s38, s33, 3"); a.salu("s_add_u32 s38, s38, s35")
    a.salu("s_mul_i32 s29, s35, 160")
    a.salu("s_sub_u32 s30, 5242880, s29")
    srd_from(a, 4, "s74", "s75", "s29", "s30")
    a.salu("s_mul_i32 s29, s38, 655360")
    srd_from(a, 12, "s72", "s73", "s29", 655360, WOP_OFF)
    a.salu("s_lshl_b32 s29, s33, 4"); a.salu("s_add_u32 s29, s29, s34"); a.salu("s_lshl_b32 s29, s29, 19")
    srd_from(a, 16, "s72", "s73", "s29", 524288, OWS_OFF)
    a.salu("s_mul_i32 s29, s34, 163840")
    a.salu("s_mul_i32 s30, s33, 1280"); a.salu("s_add_u32 s29, s29, s30")
    a.salu("s_mul_i32 s30, s35, 160"); a.salu("s_add_u32 s29, s29, s30")
    a.salu("s_sub_u32 s30, 2621440, s29")
    srd_from(a, 20, "s68", "s69", "s29", "s30")

    ACC, RING = 16, 96
    VWO, TA, VL16, VL16B, VOF, VST, VFL = 240, 245, 246, 247, 248, 252, 253
    a.salu("s_mov_b32 s30, 0x1999999a")
    for jj in range(5):
        a.valu(f"v_add_u32 v10, {64*jj}, v1", [10], [1])
        a.valu("v_mul_hi_u32 v11, v10, s30", [11], [10])
        a.valu("v_mul_u32_u24 v12, 10, v11", [12], [11])
        a.valu("v_sub_u32 v12, v10, v12", [12], [10, 12])
        a.valu("v_mul_u32_u24 v11, 0x500, v11", [11], [11])
        a.valu(f"v_lshl_add_u32 v{VWO+jj}, v12, 4, v11", [VWO+jj], [12, 11])
        if 0 < jj < 4:
            a.valu(f"v_subrev_u32 v{VWO+jj}, {1024*jj}, v{VWO+jj}", [VWO+jj], [VWO+jj])
    a.valu(f"v_lshlrev_b32 v{VL16}, 4, v1", [VL16], [1])
    a.valu(f"v_add_u32 v{VL16B}, 0x1000, v{VL16}", [VL16B], [VL16])
    for qt in range(4):
        a.valu(f"v_add_u32 v{VOF+qt}, {qt*131072}, v{VL16}", [VOF+qt], [VL16])
    a.salu("s_mul_i32 s27, s24, 20480")
    a.valu("v_lshl_add_u32 v10, v3, 2, v7", [10], [3, 7])
    a.valu("v_mul_u32_u24 v10, 160, v10", [10], [10])
    a.valu("v_lshl_add_u32 v10, v8, 3, v10", [10], [8, 10])
    a.valu(f"v_add_u32 v{TA}, s27, v10", [TA], [10])
    a.salu("s_lshl_b32 s26, s34, 3"); a.salu("s_lshl_b32 s29, s24, 1"); a.salu("s_add_u32 s26, s26, s29")
    a.barrier()
    for e in range(2):
        a.salu(f"s_add_u32 m0, s27, {e*5120}", m0=True)
        a.salu(f"s_add_u32 s29, s26, {e}")
        a.salu("s_mul_i32 s29, s29, 40960")
        for jj in range(4):
            a.vmem_dma(f"buffer_load_dwordx4 v{VWO+jj}, s[4:7], s29 offen offset:{jj*1024} lds", [VWO+jj], tag=('pk', e))
        a.salu(f"s_add_u32 m0, s27, {e*5120+4096}", m0=True)
        a.salu("s_nop 0")
        a.vmem_dma(f"buffer_load_dwordx4 v{VWO+4}, s[4:7], s29 offen lds", [VWO+4], tag=('pk', e))
    for e in range(2):
        a.wait_vm(('pk', e))
        for nt_ in range(5):
            for u in range(2):
                d = RING + 20*e + 4*nt_ + 2*u
                a.ds_read(f"ds_read_b64_tr_b16 {vr(d,2)}, v{TA} offset:{e*5120+u*2560+nt_*32}", [d, d+1], [TA], tag=('pr', e))
        a.wait_lg_all()
        a.salu(f"s_add_u32 s29, s26, {e}")
        a.salu("s_mul_i32 s29, s29, 5120")
        for nt_ in range(5):
            d = RING + 20*e + 4*nt_
            if nt_ < 4:
                a.vmem_store(f"buffer_store_dwordx4 {vr(d,4)}, v{VL16}, s[12:15], s29 offen offset:{nt_*1024} sc1", [VL16], range(d, d+4), tag='pks')
            else:
                a.vmem_store(f"buffer_store_dwordx4 {vr(d,4)}, v{VL16B}, s[12:15], s29 offen sc1", [VL16B], range(d, d+4), tag='pks')
    a.wait_vm_all()
    a.barrier()
    a.salu("s_lshl_b32 s29, s38, 7"); a.salu("s_lshl_b32 s30, s34, 2"); a.salu("s_add_u32 s29, s29, s30")
    a.salu(f"s_add_u32 s29, s29, {FW_OFF}")
    a.valu(f"v_mov_b32 v{VP}, s94", [VP], [])
    a.vmem_store(f"buffer_store_dword v{VP}, v15, s[8:11], s29 offen sc1", [15], [VP], tag='F')
    st(2)
    a.valu(f"v_lshlrev_b32 v{VFL}, 2, v4", [VFL], [4])
    a.salu("s_lshl_b32 s29, s38, 7"); a.salu(f"s_add_u32 s29, s29, {FW_OFF}")
    spin(a, VP, VFL, "s[8:11]", "s29", "s94")
    st(3)
    a.valu(f"v_lshl_add_u32 v10, v2, 2, v8", [10], [2, 8])
    a.valu(f"v_lshlrev_b32 v{VFL}, 2, v10", [VFL], [10])
    a.salu("s_lshr_b32 s29, s34, 1"); a.salu("s_lshl_b32 s30, s33, 3"); a.salu("s_add_u32 s29, s29, s30")
    a.salu("s_lshl_b32 s25, s29, 8"); a.salu(f"s_add_u32 s25, s25, {FO_OFF}")
    a.salu("s_lshl_b32 s26, s24, 5")
    a.salu("s_mul_i32 s27, s26, 5120")
    a.salu("s_lshl_b32 s28, s26, 10")
    D = 4
    def issue_A(k):
        slot = k % D
        a.salu(f"s_add_u32 s29, s27, {k*5120}")
        for nt_ in range(5):
            d = RING + 36*slot + 4*nt_
            if nt_ < 4:
                a.vmem_load(f"buffer_load_dwordx4 {vr(d,4)}, v{VL16}, s[12:15], s29 offen offset:{nt_*1024} sc1", range(d, d+4), [VL16], tag=('A', k))
            else:
                a.vmem_load(f"buffer_load_dwordx4 {vr(d,4)}, v{VL16B}, s[12:15], s29 offen sc1", range(d, d+4), [VL16B], tag=('A', k))
    def issue_B(k):
        slot = k % D
        a.salu(f"s_add_u32 s30, s28, {k*1024}")
        for qt in range(4):
            d = RING + 36*slot + 20 + 4*qt
            a.vmem_load(f"buffer_load_dwordx4 {vr(d,4)}, v{VOF+qt}, s[16:19], s30 offen sc1", range(d, d+4), [VOF+qt], tag=('B', k))
    for rnd in range(2):
        k0 = 16 * rnd
        for k in range(k0, k0 + D): issue_A(k)
        if rnd == 1: a.salu("s_add_u32 s25, s25, 128")
        spin(a, VP, VFL, "s[8:11]", "s25", "s94")
        st(4 + 2*rnd)
        for k in range(k0, k0 + D): issue_B(k)
        for k in range(k0, k0 + 16):
            slot = k % D
            a.wait_vm(('B', k))
            for nt_ in range(5):
                for qt in range(4):
                    d = ACC + 4*(nt_*4 + qt)
                    a.mfma('16', d, RING + 36*slot + 4*nt_, RING + 36*slot + 20 + 4*qt, None if k == 0 else d)
            if k + D < k0 + 16:
                issue_A(k + D); issue_B(k + D)
        st(5 + 2*rnd)
    a.salu("s_mul_i32 s27, s24, 20480")
    a.valu(f"v_add_u32 v11, s27, v{VL16}", [11], [VL16])
    for tile in range(20):
        d = ACC + 4*tile
        a.ds_write(f"ds_write_b128 v11, {vr(d,4)} offset:{tile*1024}", [11] + list(range(d, d+4)))
        if len(a.lgq) >= 12: a.wait_lg_all()
    a.wait_lg_all()
    a.barrier()
    a.salu("s_lshl_b32 s29, s24, 10")
    a.valu(f"v_add_u32 v11, s29, v{VL16}", [11], [VL16])
    a.valu(f"v_add_u32 v12, 0xa000, v11", [12], [11])
    for nt_ in range(5):
        for src in range(4):
            d = RING + 16*nt_ + 4*src
            ar = 11 if src < 2 else 12
            a.ds_read(f"ds_read_b128 {vr(d,4)}, v{ar} offset:{(src%2)*20480 + nt_*4096}", range(d, d+4), [ar], tag=('R', nt_))
        if nt_ == 2: a.wait_lg_all()
    a.wait_lg_all()
    a.valu("v_lshl_add_u32 v10, v2, 4, v4", [10], [2, 4])
    a.valu("v_mul_u32_u24 v10, 0xa00, v10", [10], [10])
    a.valu(f"v_lshl_add_u32 v{VST}, v3, 3, v10", [VST], [3, 10])
    for nt_ in range(5):
        d = RING + 16*nt_
        for k in range(4):
            a.valu(f"v_add_f32 v{d+k}, v{d+k}, v{d+4+k}", [d+k], [d+k, d+4+k])
            a.valu(f"v_add_f32 v{d+8+k}, v{d+8+k}, v{d+12+k}", [d+8+k], [d+8+k, d+12+k])
        for k in range(4):
            a.valu(f"v_add_f32 v{d+k}, v{d+k}, v{d+8+k}", [d+k], [d+k, d+8+k])
        a.valu(f"v_cvt_pk_bf16_f32 v{d+4}, v{d}, v{d+1}", [d+4], [d, d+1])
        a.valu(f"v_cvt_pk_bf16_f32 v{d+5}, v{d+2}, v{d+3}", [d+5], [d+2, d+3])
        a.vmem_store(f"buffer_store_dwordx2 {vr(d+4,2)}, v{VST}, s[20:23], 0 offen offset:{nt_*32}", [VST], [d+4, d+5], tag='st')
    st(8)
    a.salu("s_endpgm")

def merge(a, jobs, valus, PD, NB, lead=0):
    n = len(jobs); vi = 0
    for i in range(-PD, n):
        if i + PD < n:
            jobs[i + PD][0]((i + PD) % NB, ('job', i + PD))
        if i == -1:
            for _ in range(min(lead, len(valus) - vi)):
                valus[vi](); vi += 1
        if i >= 0:
            a.wait_lg(('job', i))
            jobs[i][1](i % NB)
            rem = len(valus) - vi
            k = -(-rem // (n - i))
            for _ in range(k):
                valus[vi](); vi += 1
    while vi < len(valus):
        valus[vi](); vi += 1

def gen_S(a):
    QFS = [16, 48]
    OA, SB, FB = 80, [144, 176], 208
    KA, VA, VKV = 232, 240, 248
    M, L, AL, MC, T0, T1, T2, T3 = 252, 253, 4, 6, 7, 8, 9, 10
    VO, VQ, VP, VT = 254, 255, 11, 12
    NB = 6
    SLOT = 16384
    a.label("L_stream")
    a.salu("s_setprio 3")
    st = Stamper(a, 14, 15)
    st.setup()
    st(0)
    a.salu(f"s_mov_b32 s30, 0x{f32bits(CSCALE):08x}")
    a.salu("s_lshl_b32 s29, s35, 5"); a.salu("s_add_u32 s29, s29, s37"); a.salu("s_lshl_b32 s29, s29, 17")
    srd_from(a, 12, "s42", "s43", "s29", 5 * 131072)
    srd_from(a, 16, "s44", "s45", "s29", 5 * 131072)
    a.salu("s_lshl_b32 s29, s38, 20")
    srd_from(a, 20, "s72", "s73", "s29", 1 << 20, OWS_OFF)
    a.salu("s_lshl_b32 s29, s39, 15")
    srd_from(a, 4, "s72", "s73", "s29", 5 * 32768, QWS_OFF)
    a.salu("s_lshl_b32 s27, s24, 12")
    for jj in range(4):
        a.valu(f"v_lshl_or_b32 v10, v3, 2, {jj}", [10], [3])
        a.valu("v_xor_b32 v10, v4, v10", [10], [4, 10])
        a.valu("v_lshlrev_b32 v10, 4, v10", [10], [10])
        a.valu(f"v_lshl_add_u32 v{VKV+jj}, v3, 8, v10", [VKV+jj], [3, 10])
    nt = " nt" if KV_NT else ""
    seq = [('K', 0)]
    for i in range(15): seq += [('K', i + 1), ('V', i)]
    seq += [('V', 15)]
    def issue_KV(p):
        kind, j = seq[p]
        slot = p % 5
        srd = "s[12:15]" if kind == 'K' else "s[16:19]"
        a.salu(f"s_add_u32 m0, s27, {slot*SLOT}", m0=True)
        a.salu(f"s_add_u32 s29, s27, {(j>>3)*4*131072 + (j&7)*16384}")
        for jj in range(4):
            a.vmem_dma(f"buffer_load_dwordx4 v{VKV+jj}, {srd}, s29 offen offset:{jj*1024}{nt} lds", [VKV+jj], tag=('KV', p))
    a.valu("v_and_b32 v10, 3, v6", [10], [6])
    a.valu("v_bfe_u32 v11, v6, 2, 2", [11], [6])
    a.valu("v_lshl_or_b32 v10, v10, 2, v11", [10], [10, 11])
    a.valu("v_xor_b32 v10, v5, v10", [10], [5, 10])
    a.valu("v_lshlrev_b32 v10, 4, v10", [10], [10])
    a.valu("v_lshl_add_u32 v10, v6, 8, v10", [10], [6, 10])
    for s_ in range(8):
        a.valu(f"v_xor_b32 v{KA+s_}, {s_*32}, v10", [KA+s_], [10])
    a.valu("v_lshrrev_b32 v10, 1, v8", [10], [8])
    a.valu("v_lshl_or_b32 v10, v9, 1, v10", [10], [9, 10])
    a.valu("v_and_b32 v11, 1, v8", [11], [8])
    for u in range(2):
        a.valu(f"v_or_b32 v12, {2*u}, v5", [12], [5])
        a.valu("v_xor_b32 v13, v10, v12", [13], [10, 12])
        a.valu("v_lshlrev_b32 v13, 4, v13", [13], [13])
        a.valu("v_lshl_add_u32 v13, v11, 3, v13", [13], [11, 13])
        a.valu("v_lshl_add_u32 v14, v12, 2, v7", [14], [12, 7])
        a.valu("v_lshl_add_u32 v13, v14, 8, v13", [13], [14, 13])
        a.valu("v_lshl_add_u32 v13, v7, 6, v13", [13], [7, 13])
        for t in range(4):
            a.valu(f"v_xor_b32 v{VA+2*t+u}, {t*64}, v13", [VA+2*t+u], [13])
    a.valu("v_lshl_add_u32 v10, v2, 1, v9", [10], [2, 9])
    a.valu("v_lshlrev_b32 v10, 17, v10", [10], [10])
    a.valu("v_lshl_add_u32 v11, v5, 4, v4", [11], [5, 4])
    a.valu(f"v_lshl_add_u32 v{VO}, v11, 4, v10", [VO], [11, 10])
    a.valu("v_lshlrev_b32 v10, 4, v1", [10], [1])
    a.valu(f"v_lshl_add_u32 v{VQ}, v2, 13, v10", [VQ], [2, 10])
    a.salu("s_lshl_b32 s25, s39, 6")
    a.salu("s_lshl_b32 s26, s38, 8"); a.salu("s_lshl_b32 s29, s34, 4"); a.salu("s_add_u32 s26, s26, s29")
    a.salu("s_lshl_b32 s29, s36, 2"); a.salu("s_add_u32 s26, s26, s29"); a.salu(f"s_add_u32 s26, s26, {FO_OFF}")
    get_nonce(a, VP)
    issue_KV(0); issue_KV(1)
    a.wait_vm(('KV', 0))
    for p in range(2, 5): issue_KV(p)
    st(1)
    spin(a, VP, 15, "s[8:11]", "s25", "s94")
    st(2)
    def load_Q(task, srd="s[4:7]", sc=" sc1"):
        qf = QFS[task]
        a.salu(f"s_mov_b32 s29, {task*4*32768}")
        a.salu(f"s_mov_b32 s28, {task*4*32768+4096}")
        for s_ in range(8):
            so = "s29" if s_ < 4 else "s28"
            a.vmem_load(f"buffer_load_dwordx4 {vr(qf+4*s_,4)}, v{VQ}, {srd}, {so} offen offset:{(s_%4)*1024}{sc}", range(qf+4*s_, qf+4*s_+4), [VQ], tag=('Q', task))
    load_Q(0)
    a.wait_vm(('Q', 0))

    base = {'K': 0, 'V': 0}
    def rebase(which, slot):
        regs = range(KA, KA+8) if which == 'K' else range(VA, VA+8)
        need = base[which]
        if slot == 4: need = SLOT
        if slot == 0: need = 0
        if need != base[which]:
            for r in regs:
                if need > base[which]:
                    a.valu(f"v_add_u32 v{r}, {need-base[which]}, v{r}", [r], [r])
                else:
                    a.valu(f"v_subrev_u32 v{r}, {base[which]-need}, v{r}", [r], [r])
            base[which] = need
        return slot * SLOT - base[which]

    def V(text, dst, src, **kw):
        return lambda: a.valu(text, dst, src, **kw)

    def part1(j):
        SS = SB[j % 2]; T = j & 7
        o = []
        for c_, tr in ((0, T0), (16, T1)):
            o.append(V(f"v_max3_f32 v{tr}, v{SS+c_}, v{SS+c_+1}, v{SS+c_+2}", [tr], [SS+c_, SS+c_+1, SS+c_+2]))
        for k in range(3, 15, 2):
            for c_, tr in ((0, T0), (16, T1)):
                o.append(V(f"v_max3_f32 v{tr}, v{tr}, v{SS+c_+k}, v{SS+c_+k+1}", [tr], [tr, SS+c_+k, SS+c_+k+1]))
        o.append(V(f"v_max3_f32 v{T0}, v{T0}, v{T1}, v{SS+15}", [T0], [T0, T1, SS+15]))
        o.append(V(f"v_max_f32 v{T0}, v{T0}, v{SS+31}", [T0], [T0, SS+31]))
        o.append(V(f"v_mov_b32 v{T1}, v{T0}", [T1], [T0]))
        o.append(V(f"v_permlane32_swap_b32 v{T0}, v{T1}", [T0, T1], [T0, T1], kind='permlane'))
        if T == 0:
            o.append(V(f"v_max_f32 v{M}, v{T0}, v{T1}", [M], [T0, T1]))
        else:
            o.append(V(f"v_max3_f32 v{T2}, v{T0}, v{T1}, v{M}", [T2], [T0, T1, M]))
            o.append(V(f"v_sub_f32 v{T3}, v{M}, v{T2}", [T3], [M, T2]))
            o.append(V(f"v_mul_f32 v{T3}, s30, v{T3}", [T3], [T3]))
            o.append(V(f"v_exp_f32 v{AL}, v{T3}", [AL], [T3], trans=True))
            o.append(V(f"v_mov_b32 v{M}, v{T2}", [M], [T2]))
        o.append(V(f"v_mul_f32 v{MC}, s30, v{M}", [MC], [M]))
        for i in range(32):
            o.append(V(f"v_fma_f32 v{SS+i}, v{SS+i}, s30, -v{MC}", [SS+i], [SS+i, MC]))
        return o

    def part2(j):
        SS = SB[j % 2]; T = j & 7
        o = []
        resc = []
        if T > 0:
            for i in range(0, 64, 2):
                resc.append(V(f"v_pk_mul_f32 {vr(OA+i,2)}, {vr(OA+i,2)}, {vr(AL,2)} op_sel_hi:[1,0]", [OA+i, OA+i+1], [OA+i, OA+i+1, AL]))
        for i in range(32):
            o.append(V(f"v_exp_f32 v{SS+i}, v{SS+i}", [SS+i], [SS+i], trans=True))
            if resc: o.append(resc.pop(0))
        for c_, tr in ((0, T0), (8, T1), (16, T2), (24, T3)):
            o.append(V(f"v_add_f32 v{tr}, v{SS+c_}, v{SS+c_+1}", [tr], [SS+c_, SS+c_+1]))
        for k in range(2, 8):
            for c_, tr in ((0, T0), (8, T1), (16, T2), (24, T3)):
                o.append(V(f"v_add_f32 v{tr}, v{tr}, v{SS+c_+k}", [tr], [tr, SS+c_+k]))
        o.append(V(f"v_add_f32 v{T0}, v{T0}, v{T1}", [T0], [T0, T1]))
        o.append(V(f"v_add_f32 v{T2}, v{T2}, v{T3}", [T2], [T2, T3]))
        if T == 0:
            o.append(V(f"v_add_f32 v{L}, v{T0}, v{T2}", [L], [T0, T2]))
        else:
            o.append(V(f"v_add_f32 v{T0}, v{T0}, v{T2}", [T0], [T0, T2]))
            o.append(V(f"v_fma_f32 v{L}, v{L}, v{AL}, v{T0}", [L], [L, AL, T0]))
        for i in range(16):
            o.append(V(f"v_cvt_pk_bf16_f32 v{SS+i}, v{SS+2*i}, v{SS+2*i+1}", [SS+i], [SS+2*i, SS+2*i+1]))
        return o

    def epilogue(task):
        TMP = SB[1]
        a.valu(f"v_mov_b32 v{T0}, v{L}", [T0], [L])
        a.valu(f"v_mov_b32 v{T1}, v{L}", [T1], [L])
        a.valu(f"v_permlane32_swap_b32 v{T0}, v{T1}", [T0, T1], [T0, T1], kind='permlane')
        a.valu(f"v_add_f32 v{T0}, v{T0}, v{T1}", [T0], [T0, T1])
        a.valu(f"v_rcp_f32 v{AL}, v{T0}", [AL], [T0], trans=True)
        a.salu(f"s_add_u32 s29, s37, {4*task}")
        a.salu("s_lshl_b32 s29, s29, 12")
        for t in range(4):
            for i in range(0, 16, 2):
                r = OA + 16*t + i
                a.valu(f"v_pk_mul_f32 {vr(r,2)}, {vr(r,2)}, {vr(AL,2)} op_sel_hi:[1,0]", [r, r+1], [r, r+1, AL])
            for piece in range(2):
                d = TMP + 8*t + 4*piece
                for k, rr in enumerate((4*piece, 4*piece+2, 8+4*piece, 8+4*piece+2)):
                    r = OA + 16*t + rr
                    a.valu(f"v_cvt_pk_bf16_f32 v{d+k}, v{r}, v{r+1}", [d+k], [r, r+1])
                a.vmem_store(f"buffer_store_dwordx4 {vr(d,4)}, v{VO}, s[20:23], s29 offen offset:{t*1024+piece*512} sc1", [VO], range(d, d+4), tag='O')

    POLL_P, CHECK_P, FLAG_P = 4, 9, 22
    for p in range(32):
        kind, j = seq[p]
        slot = p % 5
        off = rebase(kind, slot)
        if kind == 'K' and j == 8:
            ls = a.newlabel("QS")
            a.salu("s_cmp_eq_u32 s93, 0")
            a.salu(f"s_cbranch_scc1 {ls}")
            saved = list(a.vmq)
            a.salu("s_add_u32 s25, s25, 256")
            spin(a, VP, 15, "s[8:11]", "s25", "s94")
            load_Q(1)
            a.wait_vm_all()
            a.label(ls)
            a.vmq[:] = saved
            a.nop(2)
            a.wait_vm(('Q', 1))
        a.wait_vm(('KV', p))
        a.barrier()
        if p >= 1 and p + 4 < 32: issue_KV(p + 4)
        if p == POLL_P:
            a.salu("s_add_u32 s29, s25, 256")
            a.vmem_load(f"buffer_load_dword v{VP}, v15, s[8:11], s29 offen sc1", [VP], [15], tag='poll')
        if p == CHECK_P:
            assert 'poll' not in a.vmq
            a.valu(f"v_readfirstlane_b32 s93, v{VP}", [], [VP], sdst=['s93'], kind='readlane')
            a.nop(4)
            lr, lj = a.newlabel("QR"), a.newlabel("QJ")
            a.salu("s_cmp_eq_u32 s93, s94")
            a.salu(f"s_cbranch_scc1 {lr}")
            saved = list(a.vmq); t0 = a.t
            a.salu("s_mov_b32 s93, 1")
            load_Q(1, srd="s[12:15]", sc="")
            a.salu(f"s_branch {lj}")
            a.vmq[:] = saved
            a.label(lr)
            a.salu("s_mov_b32 s93, 0")
            load_Q(1)
            a.label(lj)
            a.t = t0 + 4
        if p == FLAG_P:
            assert 'O' not in a.vmq
            a.valu(f"v_mov_b32 v{VP}, s94", [VP], [])
            a.vmem_store(f"buffer_store_dword v{VP}, v15, s[8:11], s26 offen sc1", [15], [VP], tag='F')
        st(3 + p)
        jobs = []
        if kind == 'K':
            QF = QFS[j >> 3]; SS = SB[j % 2]
            for kt in range(2):
                for s_ in range(8):
                    def rd(buf, tag, kt=kt, s_=s_):
                        d = FB + 4*buf
                        a.ds_read(f"ds_read_b128 {vr(d,4)}, v{KA+s_} offset:{off+kt*8192}", range(d, d+4), [KA+s_], tag=tag)
                    def mm(buf, kt=kt, s_=s_, QF=QF, SS=SS):
                        a.mfma('32', SS+16*kt, FB+4*buf, QF+4*s_, None if s_ == 0 else SS+16*kt)
                    jobs.append((rd, mm))
            merge(a, jobs, part2(j - 1) if j > 0 else [], 5, NB, lead=8)
            if j == 0:
                for f in part1(0): f()
        else:
            if j == 15:
                for f in part2(15): f()
            PP = SB[j % 2]
            for jq in range(4):
                for t in range(4):
                    def rd(buf, tag, jq=jq, t=t):
                        for u in range(2):
                            d = FB + 4*buf + 2*u
                            a.ds_read(f"ds_read_b64_tr_b16 {vr(d,2)}, v{VA+2*t+u} offset:{off+jq*4096}", [d, d+1], [VA+2*t+u], tag=tag)
                    def mm(buf, jq=jq, t=t, j=j, PP=PP):
                        first = ((j & 7) == 0 and jq == 0)
                        a.mfma('32', OA+16*t, FB+4*buf, PP+4*jq, None if first else OA+16*t)
                    jobs.append((rd, mm))
            merge(a, jobs, part1(j + 1) if j < 15 else [], 4, NB, lead=6)
            if (j & 7) == 7:
                epilogue(j >> 3)
    a.wait_vm_all()
    a.barrier()
    a.salu("s_add_u32 s26, s26, 128")
    a.valu(f"v_mov_b32 v{VP}, s94", [VP], [])
    a.vmem_store(f"buffer_store_dword v{VP}, v15, s[8:11], s26 offen sc1", [15], [VP], tag='F')
    st(35)
    a.label("L_done")
    a.salu("s_endpgm")

def main(out):
    hdr = f"""; Generated by gen/gen_v2.py (hand-written generator).
; @launch grid=(512,1,1) block=(256,1,1) lds=81920
.amdgcn_target "amdgcn-amd-amdhsa--gfx950"
.text
.globl {KNAME}
.p2align 8
.type {KNAME},@function
"""
    a = Asm()
    common_prologue(a)
    import copy
    save = (a.t, dict(a.w_valu), dict(a.w_sgpr_valu))
    gen_G(a)
    a.t = save[0]; a.w_valu = save[1]; a.w_sgpr_valu = save[2]; a.w_trans = {}; a.w_mfma = {}; a.rc_mfma = {}; a.st_data = {}; a.vmq = []; a.lgq = []
    gen_S(a)
    tail = f""".section .rodata,"a"
.p2align 6
.amdhsa_kernel {KNAME}
  .amdhsa_next_free_vgpr 256
  .amdhsa_next_free_sgpr 102
  .amdhsa_accum_offset 256
  .amdhsa_group_segment_fixed_size 0
  .amdhsa_kernarg_size 104
  .amdhsa_user_sgpr_count 2
  .amdhsa_user_sgpr_kernarg_segment_ptr 1
  .amdhsa_system_sgpr_workgroup_id_x 1
.end_amdhsa_kernel
"""
    open(out, "w").write(hdr + a.text() + tail)

if __name__ == "__main__":
    main(sys.argv[1] if len(sys.argv) > 1 else f"cdna_kernels/{NAME}.s")
```

```python
import sys, struct, os, math
sys.path.insert(0, 'gen')
from asmlib import *

NAME = "concat_heads__gqa_block_cached__mha_block_cached__near_ridge"
KNAME = NAME + "_kernel"
CSCALE = (128 ** -0.5) * math.log2(math.e)
def f32bits(x): return struct.unpack('<I', struct.pack('<f', x))[0]

KV_NT = int(os.environ.get("KV_NT", "1"))
STAMP = int(os.environ.get("STAMP", "0"))
TOUCH = int(os.environ.get("TOUCH", "1"))
SDELAY = int(os.environ.get("SDELAY", "1"))
GEXIT = int(os.environ.get("GEXIT", "0"))
SNOC = int(os.environ.get("SNOC", "0"))
AHEAD = int(os.environ.get("AHEAD", "2"))
WNT = " nt" if int(os.environ.get("WNT", "1")) else ""
SPIN_LIMIT = 1 << 21
OWS_OFF, QWS_OFF, WOP_OFF, FLG_OFF, STAMP_OFF = 0, 16 << 20, 32 << 20, 48 << 20, 64 << 20
FO_OFF, FW_OFF = 65536, 131072

def pipeline(a, jobs, PD, NB, hook=None):
    n = len(jobs)
    for i in range(-PD, n):
        if i + PD < n:
            if hook: hook(i + PD)
            jobs[i + PD][0]((i + PD) % NB, ('job', i + PD))
        if i >= 0:
            a.wait_lg(('job', i))
            jobs[i][1](i % NB)

def make_srd(a, d, lo, hi, size):
    a.salu(f"s_mov_b32 s{d}, {lo}")
    a.salu(f"s_and_b32 s{d+1}, {hi}, 0xffff")
    a.salu(f"s_mov_b32 s{d+2}, {size}")
    a.salu(f"s_mov_b32 s{d+3}, 0x00020000")

def srd_from(a, d, base_lo, base_hi, off_sreg, size, const_off=0):
    a.salu(f"s_add_u32 s{d}, {base_lo}, {off_sreg}")
    a.salu(f"s_addc_u32 s{d+1}, {base_hi}, 0")
    if const_off:
        a.salu(f"s_add_u32 s{d}, s{d}, {const_off}")
        a.salu(f"s_addc_u32 s{d+1}, s{d+1}, 0")
    a.salu(f"s_and_b32 s{d+1}, s{d+1}, 0xffff")
    a.salu(f"s_mov_b32 s{d+2}, {size}")
    a.salu(f"s_mov_b32 s{d+3}, 0x00020000")

def spin(a, vp, voff, srd, soff, cmp_with, want_equal=True):
    l, ld = a.newlabel("SP"), a.newlabel("SD")
    a.salu("s_mov_b32 s95, 0")
    a.nop(4)
    a.label(l)
    a.raw(f"    buffer_load_dword v{vp}, v{voff}, {srd}, {soff} offen sc1")
    a.raw("    s_waitcnt vmcnt(0)")
    a.raw(f"    v_cmp_{'ne' if want_equal else 'eq'}_u32 vcc, {cmp_with}, v{vp}")
    a.raw(f"    s_cbranch_vccz {ld}")
    a.raw("    s_add_u32 s95, s95, 1")
    a.raw(f"    s_cmp_gt_u32 s95, {SPIN_LIMIT}")
    a.raw(f"    s_cbranch_scc1 {ld}")
    a.raw("    s_sleep 2")
    a.raw(f"    s_branch {l}")
    a.label(ld)
    a.vmq.clear()
    a.nop(4)

class Stamper:
    def __init__(self, a, vtmp, vzero):
        self.a, self.vt, self.vz = a, vtmp, vzero
    def setup(self):
        a = self.a
        if not STAMP: return
        a.salu("s_mov_b32 s78, 0")
        srd_from(a, 80, "s72", "s73", "s78", 1 << 20, STAMP_OFF)
        a.salu("s_lshl_b32 s78, s2, 2"); a.salu("s_add_u32 s78, s78, s24"); a.salu("s_lshl_b32 s78, s78, 8")
    def __call__(self, idx, sreg="s78"):
        a = self.a
        if not STAMP: return
        a.wait_lg_all()
        if idx == 0:
            a.salu("s_getreg_b32 s90, hwreg(HW_REG_HW_ID)")
            a.salu("s_getreg_b32 s91, hwreg(HW_REG_XCC_ID)")
            a.salu("s_lshl_b32 s91, s91, 24")
            a.salu("s_and_b32 s90, s90, 0xffffff")
            a.salu("s_or_b32 s90, s90, s91")
            a.valu(f"v_mov_b32 v{self.vt}, s90", [self.vt], [])
            a.vmem_store(f"buffer_store_dword v{self.vt}, v{self.vz}, s[80:83], s78 offen offset:252", [self.vz], [self.vt], tag='stamp')
        a.salu("s_memrealtime s[90:91]")
        a.salu("s_waitcnt lgkmcnt(0)")
        a.valu(f"v_mov_b32 v{self.vt}, s90", [self.vt], [])
        a.vmem_store(f"buffer_store_dword v{self.vt}, v{self.vz}, s[80:83], {sreg} offen offset:{idx*4}", [self.vz], [self.vt], tag='stamp')

def common_prologue(a):
    a.label(KNAME)
    a.salu("s_cmp_ge_u32 s2, 512")
    a.salu("s_cbranch_scc1 L_done")
    a.salu("s_load_dwordx16 s[48:63], s[0:1], 0")
    a.salu("s_load_dwordx8 s[64:71], s[0:1], 64")
    a.salu("s_load_dwordx2 s[72:73], s[0:1], 96")
    a.salu("s_and_b32 s31, s2, 7")
    a.salu("s_bfe_u32 s32, s2, 0x50003")
    a.salu("s_lshr_b32 s33, s31, 2")
    a.salu("s_and_b32 s34, s31, 3")
    a.salu("s_and_b32 s35, s32, 7")
    a.salu("s_lshr_b32 s36, s32, 3")
    a.salu("s_lshl_b32 s37, s34, 3")
    a.salu("s_add_u32 s37, s37, s36")
    a.salu("s_lshl_b32 s38, s33, 3")
    a.salu("s_add_u32 s38, s38, s35")
    a.salu("s_lshl_b32 s39, s38, 5")
    a.salu("s_add_u32 s39, s39, s37")
    a.valu("v_and_b32 v1, 63, v0", [1], [0])
    a.valu("v_lshrrev_b32 v2, 6, v0", [2], [0])
    a.valu("v_readfirstlane_b32 s24, v2", [], [2], sdst=['s24'], kind='readlane')
    a.valu("v_lshrrev_b32 v3, 4, v1", [3], [1])
    a.valu("v_and_b32 v4, 15, v1", [4], [1])
    a.valu("v_lshrrev_b32 v5, 5, v1", [5], [1])
    a.valu("v_and_b32 v6, 31, v1", [6], [1])
    a.valu("v_bfe_u32 v7, v1, 2, 2", [7], [1])
    a.valu("v_and_b32 v8, 3, v1", [8], [1])
    a.valu("v_and_b32 v9, 1, v3", [9], [3])
    a.valu("v_mov_b32 v15, 0", [15], [])
    a.salu("s_waitcnt lgkmcnt(0)")
    a.salu("s_cmp_eq_u32 s33, 1")
    a.salu("s_cselect_b64 s[40:41], s[58:59], s[48:49]")
    a.salu("s_cselect_b64 s[42:43], s[60:61], s[50:51]")
    a.salu("s_cselect_b64 s[44:45], s[62:63], s[52:53]")
    a.salu("s_cselect_b64 s[46:47], s[64:65], s[54:55]")
    a.salu("s_cselect_b64 s[74:75], s[66:67], s[56:57]")
    a.salu("s_mov_b32 s29, 0")
    srd_from(a, 8, "s72", "s73", "s29", 1 << 20, FLG_OFF)
    make_srd(a, 84, "s70", "s71", 256)
    a.salu("s_cmp_ge_u32 s2, 256")
    a.salu("s_cbranch_scc1 L_stream")

def get_nonce(a, vp):
    spin(a, vp, 15, "s[84:87]", "0", "0", want_equal=False)
    a.valu(f"v_readfirstlane_b32 s94, v{vp}", [], [vp], sdst=['s94'], kind='readlane')
    a.nop(5)

def qproj(a, R, head_add, st, late_hook=None):
    OA, FB, XF, WA, VW, VX, XA, TMP = R['OA'], R['FB'], R['XF'], R['WA'], R['VW'], R['VX'], R['XA'], R['TMP']
    NB = 6
    a.salu("s_mul_i32 s29, s35, 163840")
    srd_from(a, 4, "s40", "s41", "s29", 163840)
    a.salu(f"s_add_u32 s93, s37, {head_add}")
    a.salu("s_lshl_b32 s93, s93, 8")
    a.salu("s_sub_u32 s30, 5242880, s93")
    srd_from(a, 12, "s46", "s47", "s93", "s30")
    a.salu("s_lshl_b32 s26, s24, 11")
    a.salu("s_lshl_b32 s27, s24, 16")
    a.salu("s_lshl_b32 s28, s24, 12")
    a.salu("s_add_u32 s28, s28, 0xc000")
    a.salu("s_mul_i32 s25, s24, 40960")
    for jj in range(2):
        a.valu(f"v_lshl_or_b32 v10, v2, 1, {jj}", [10], [2])
        a.valu("v_and_b32 v10, 3, v10", [10], [10])
        a.valu("v_lshl_or_b32 v10, v3, 2, v10", [10], [3, 10])
        a.valu("v_xor_b32 v10, v4, v10", [10], [4, 10])
        a.valu("v_lshlrev_b32 v10, 4, v10", [10], [10])
        a.valu("v_lshl_add_u32 v10, v3, 13, v10", [10], [3, 10])
        a.valu(f"v_add_u32 v{VW+jj}, {jj*(4*8192-1024)}, v10", [VW+jj], [10])
    a.valu("v_lshrrev_b32 v11, 3, v1", [11], [1])
    a.valu("v_mul_u32_u24 v11, 0x500, v11", [11], [11])
    a.valu("v_and_b32 v12, 7, v1", [12], [1])
    for jj in range(4):
        a.valu(f"v_add_u32 v10, {(4*jj) & 7}, v3", [10], [3])
        a.valu("v_xor_b32 v10, v12, v10", [10], [12, 10])
        a.valu("v_lshl_add_u32 v10, v10, 4, v11", [10], [10, 11])
        a.valu(f"v_add_u32 v{VX+jj}, {jj*(8*1280-1024)}, v10", [VX+jj], [10])

    def issue_W(s_):
        buf = s_ % 6
        a.salu(f"s_add_u32 m0, s26, {buf*8192}", m0=True)
        a.salu(f"s_add_u32 s29, s27, {s_*32*8192}")
        for jj in range(2):
            a.vmem_dma(f"buffer_load_dwordx4 v{VW+jj}, s[12:15], s29 offen offset:{jj*1024}{WNT} lds", [VW+jj], tag=('W', s_))
    def issue_X(c):
        a.salu(f"s_add_u32 m0, s28, {(c%2)*16384}", m0=True)
        a.salu(f"s_add_u32 s29, s25, {c*128}")
        for jj in range(4):
            a.vmem_dma(f"buffer_load_dwordx4 v{VX+jj}, s[4:7], s29 offen offset:{jj*1024} lds", [VX+jj], tag=('X', c))
    def read_X(c):
        a.wait_vm(('X', c))
        for sp in range(4):
            d = XF + 16*(c % 2) + 4*sp
            a.ds_read(f"ds_read_b128 {vr(d,4)}, v{XA+sp} offset:{(c%2)*16384}", range(d, d+4), [XA+sp], tag=('xf', c))

    issue_X(0); issue_W(0); issue_W(1); issue_X(1)
    for s_ in range(2, 6): issue_W(s_)
    if TOUCH:
        a.salu("s_lshl_b32 s29, s36, 1"); a.salu(f"s_add_u32 s29, s29, {1 if head_add else 0}")
        a.salu("s_lshl_b32 s29, s29, 2"); a.salu("s_add_u32 s29, s29, s24"); a.salu("s_mul_i32 s29, s29, 5120")
        a.valu("v_lshlrev_b32 v10, 7, v1", [10], [1])
        a.valu("v_cmp_gt_u32 vcc, 40, v1", [], [1], sdst=['vcc'])
        a.valu("v_mov_b32 v12, 0x7fffffff", [12], [])
        a.valu("v_cndmask_b32 v10, v12, v10, vcc", [10], [10, 12], ssrc=['vcc'])
        a.vmem_load(f"buffer_load_dword v{TMP}, v10, s[4:7], s29 offen", [TMP], [10], tag='pf')
        a.salu("s_mul_i32 s29, s35, 80"); a.salu("s_mul_i32 s30, s24, 20"); a.salu("s_add_u32 s29, s29, s30")
        a.salu("s_lshl_b32 s29, s29, 13")
        a.valu("v_lshrrev_b32 v10, 1, v1", [10], [1])
        a.valu("v_lshlrev_b32 v10, 13, v10", [10], [10])
        a.valu("v_and_b32 v11, 1, v1", [11], [1])
        a.valu("v_lshl_add_u32 v10, v11, 7, v10", [10], [11, 10])
        a.valu("v_cndmask_b32 v10, v12, v10, vcc", [10], [10, 12], ssrc=['vcc'])
        a.vmem_load(f"buffer_load_dword v{TMP+1}, v10, s[12:15], s29 offen{WNT}", [TMP+1], [10], tag='pf')
    a.valu("v_bfe_u32 v10, v6, 1, 3", [10], [6])
    a.valu("v_xor_b32 v10, v5, v10", [10], [5, 10])
    a.valu("v_lshlrev_b32 v10, 4, v10", [10], [10])
    a.valu("v_lshl_add_u32 v10, v6, 7, v10", [10], [6, 10])
    a.valu("v_lshl_add_u32 v10, v2, 12, v10", [10], [2, 10])
    a.valu("v_add_u32 v10, 0xc000, v10", [10], [10])
    for sp in range(4):
        a.valu(f"v_xor_b32 v{XA+sp}, {sp*32}, v10", [XA+sp], [10])
    a.valu("v_and_b32 v10, 1, v8", [10], [8])
    a.valu("v_lshl_or_b32 v10, v9, 1, v10", [10], [9, 10])
    a.valu("v_lshrrev_b32 v11, 1, v8", [11], [8])
    for u in range(2):
        a.valu(f"v_lshl_or_b32 v12, v5, 1, {u}", [12], [5])
        a.valu("v_xor_b32 v13, v10, v12", [13], [10, 12])
        a.valu("v_lshlrev_b32 v13, 4, v13", [13], [13])
        a.valu("v_lshl_add_u32 v13, v11, 3, v13", [13], [11, 13])
        a.valu("v_lshl_add_u32 v14, v12, 2, v7", [14], [12, 7])
        a.valu("v_lshl_add_u32 v13, v14, 8, v13", [13], [14, 13])
        a.valu("v_lshl_add_u32 v13, v7, 6, v13", [13], [7, 13])
        for t in range(4):
            a.valu(f"v_xor_b32 v{WA+2*t+u}, {t*64}, v13", [WA+2*t+u], [13])
    read_X(0)
    jobs = []
    for ks in range(40):
        s_ = ks // 2; sp2 = ks % 2; c = ks // 4; sp = ks % 4
        for t in range(4):
            def rd(buf, tag, s_=s_, sp2=sp2, t=t):
                for u in range(2):
                    d = FB + 4*buf + 2*u
                    a.ds_read(f"ds_read_b64_tr_b16 {vr(d,2)}, v{WA+2*t+u} offset:{(s_%6)*8192+sp2*4096}", [d, d+1], [WA+2*t+u], tag=tag)
            def mm(buf, ks=ks, t=t, c=c, sp=sp):
                a.mfma('32', OA+16*t, FB+4*buf, XF+16*(c % 2)+4*sp, None if ks == 0 else OA+16*t)
            jobs.append((rd, mm))
    def hook(j):
        if j % 8 == 0:
            s_ = j // 8
            a.wait_vm(('W', s_))
            a.barrier()
            if s_ >= 2 and s_ + 4 < 20: issue_W(s_ + 4)
            if late_hook: late_hook(s_)
            if s_ in (0, 10): st(40 + s_ // 10)
        if j % 16 == 8:
            c = j // 16
            if c + 2 < 10: issue_X(c + 2)
            if c + 1 < 10: read_X(c + 1)
    a.wait_lg(('xf', 0))
    pipeline(a, jobs, 4, NB, hook)

def q_to_bf16(a, OA, QF):
    for s_ in range(8):
        t = s_ >> 1
        for ii in range(4):
            r = OA + 16*t + 8*(s_ & 1) + 2*ii
            a.valu(f"v_cvt_pk_bf16_f32 v{QF+4*s_+ii}, v{r}, v{r+1}", [QF+4*s_+ii], [r, r+1])

def gen_G(a):
    R = dict(OA=16, FB=80, XF=104, WA=136, VW=144, VX=146, XA=150, TMP=156)
    VQ, QF = 154, 160
    VP, VT = 14, 13
    st = Stamper(a, 158, 15)
    st.setup()
    st(0)
    l0 = a.newlabel("NN")
    a.salu("s_or_b32 s29, s2, s24")
    a.salu("s_cmp_lg_u32 s29, 0")
    a.salu(f"s_cbranch_scc1 {l0}")
    a.salu("s_memrealtime s[90:91]")
    a.salu("s_waitcnt lgkmcnt(0)")
    a.salu("s_or_b32 s90, s90, 1")
    a.valu(f"v_mov_b32 v{VP}, s90", [VP], [])
    a.raw(f"    buffer_store_dword v{VP}, v15, s[84:87], 0 offen sc1")
    a.raw("    s_waitcnt vmcnt(0)")
    a.label(l0)
    a.nop(3)
    qproj(a, R, 4, st)
    q_to_bf16(a, R['OA'], QF)
    a.salu("s_lshl_b32 s29, s39, 15")
    srd_from(a, 16, "s72", "s73", "s29", 5 * 32768, QWS_OFF)
    a.valu("v_lshlrev_b32 v10, 4, v1", [10], [1])
    a.valu(f"v_lshl_add_u32 v{VQ}, v2, 13, v10", [VQ], [2, 10])
    a.salu(f"s_mov_b32 s29, {4*32768}")
    for s_ in range(8):
        if s_ == 4:
            a.salu("s_add_u32 s29, s29, 4096")
        a.vmem_store(f"buffer_store_dwordx4 {vr(QF+4*s_,4)}, v{VQ}, s[16:19], s29 offen offset:{(s_%4)*1024} sc1", [VQ], range(QF+4*s_, QF+4*s_+4), tag='Q')
    st(9)
    get_nonce(a, VP)
    a.barrier()
    a.salu("s_add_u32 s29, s39, 4"); a.salu("s_lshl_b32 s29, s29, 6")
    a.valu(f"v_mov_b32 v{VP}, s94", [VP], [], ssrc=['s94'])
    a.vmem_store(f"buffer_store_dword v{VP}, v15, s[8:11], s29 offen sc1", [15], [VP], tag='F')
    st(1)
    if GEXIT: a.salu("s_endpgm")
    a.salu("s_bfe_u32 s34, s31, 0x10001")
    a.salu("s_and_b32 s35, s31, 1")
    a.salu("s_and_b32 s36, s32, 7")
    a.salu("s_lshl_b32 s34, s34, 3")
    a.salu("s_add_u32 s34, s34, s36")
    a.salu("s_lshr_b32 s36, s32, 3")
    a.salu("s_lshl_b32 s35, s35, 2")
    a.salu("s_add_u32 s35, s35, s36")
    a.salu("s_lshl_b32 s38, s33, 3"); a.salu("s_add_u32 s38, s38, s35")
    a.salu("s_mul_i32 s29, s38, 655360")
    srd_from(a, 12, "s72", "s73", "s29", 655360, WOP_OFF)
    a.salu("s_lshl_b32 s29, s33, 4"); a.salu("s_add_u32 s29, s29, s34"); a.salu("s_lshl_b32 s29, s29, 19")
    srd_from(a, 16, "s72", "s73", "s29", 524288, OWS_OFF)
    a.salu("s_mul_i32 s29, s34, 163840")
    a.salu("s_mul_i32 s30, s33, 1280"); a.salu("s_add_u32 s29, s29, s30")
    a.salu("s_mul_i32 s30, s35, 160"); a.salu("s_add_u32 s29, s29, s30")
    a.salu("s_sub_u32 s30, 2621440, s29")
    srd_from(a, 20, "s68", "s69", "s29", "s30")

    ACC, RING = 16, 96
    TA, VL16, VL16B, VOF, VST, VFL = 245, 246, 247, 248, 252, 253
    a.salu("s_and_b32 s26, s31, 3"); a.salu("s_lshl_b32 s26, s26, 5"); a.salu("s_add_u32 s26, s26, s32")
    a.salu("s_mul_i32 s29, s26, 40960")
    srd_from(a, 4, "s74", "s75", "s29", 40960)
    a.salu("s_mul_i32 s29, s33, 5242880")
    srd_from(a, 96, "s72", "s73", "s29", 5242880, WOP_OFF)
    a.valu(f"v_lshlrev_b32 v{VL16}, 4, v1", [VL16], [1])
    a.valu(f"v_add_u32 v{VL16B}, 0x1000, v{VL16}", [VL16B], [VL16])
    for qt in range(4):
        a.valu(f"v_add_u32 v{VOF+qt}, {qt*131072}, v{VL16}", [VOF+qt], [VL16])
    a.valu("v_lshl_add_u32 v10, v3, 2, v7", [10], [3, 7])
    a.valu("v_mul_u32_u24 v10, 0x500, v10", [10], [10])
    a.valu("v_lshl_add_u32 v10, v8, 3, v10", [10], [8, 10])
    a.salu("s_mul_i32 s27, s24, 320")
    a.valu(f"v_add_u32 v{TA}, s27, v10", [TA], [10])
    a.salu("s_mul_i32 s27, s24, 10240")
    for grp in range(3):
        a.salu(f"s_add_u32 m0, s27, {grp*4096}", m0=True)
        a.salu(f"s_add_u32 s29, s27, {grp*4096}")
        for jj in range(4 if grp < 2 else 2):
            a.vmem_dma(f"buffer_load_dwordx4 v{VL16}, s[4:7], s29 offen offset:{jj*1024}{WNT} lds", [VL16], tag='pk')
    a.wait_vm('pk')
    a.barrier()
    for half in range(2):
        for nt_ in range(5):
            for u in range(2):
                d = RING + 20*half + 4*nt_ + 2*u
                a.ds_read(f"ds_read_b64_tr_b16 {vr(d,2)}, v{TA} offset:{u*20480+(half*5+nt_)*32}", [d, d+1], [TA], tag=('pr', half))
        a.wait_lg_all()
        a.salu(f"s_lshl_b32 s29, s24, 1"); a.salu(f"s_add_u32 s29, s29, {half}"); a.salu("s_lshl_b32 s29, s29, 7")
        a.salu("s_add_u32 s29, s29, s26"); a.salu("s_mul_i32 s29, s29, 5120")
        for nt_ in range(5):
            d = RING + 20*half + 4*nt_
            if nt_ < 4:
                a.vmem_store(f"buffer_store_dwordx4 {vr(d,4)}, v{VL16}, s[96:99], s29 offen offset:{nt_*1024} sc1", [VL16], range(d, d+4), tag='pks')
            else:
                a.vmem_store(f"buffer_store_dwordx4 {vr(d,4)}, v{VL16B}, s[96:99], s29 offen sc1", [VL16B], range(d, d+4), tag='pks')
    a.wait_vm_all()
    a.barrier()
    a.salu("s_lshl_b32 s29, s33, 9"); a.salu("s_lshl_b32 s30, s26, 2"); a.salu("s_add_u32 s29, s29, s30")
    a.salu(f"s_add_u32 s29, s29, {FW_OFF}")
    a.valu(f"v_mov_b32 v{VP}, s94", [VP], [])
    a.vmem_store(f"buffer_store_dword v{VP}, v15, s[8:11], s29 offen sc1", [15], [VP], tag='F')
    st(2)
    a.valu(f"v_lshl_add_u32 v10, v2, 5, v6", [10], [2, 6])
    a.valu(f"v_lshlrev_b32 v{VFL}, 2, v10", [VFL], [10])
    a.salu("s_lshl_b32 s29, s33, 9"); a.salu(f"s_add_u32 s29, s29, {FW_OFF}")
    spin(a, VP, VFL, "s[8:11]", "s29", "s94")
    st(3)
    a.valu(f"v_lshl_add_u32 v10, v2, 2, v8", [10], [2, 8])
    a.valu(f"v_lshlrev_b32 v{VFL}, 2, v10", [VFL], [10])
    a.salu("s_lshr_b32 s29, s34, 1"); a.salu("s_lshl_b32 s30, s33, 3"); a.salu("s_add_u32 s29, s29, s30")
    a.salu("s_lshl_b32 s25, s29, 8"); a.salu(f"s_add_u32 s25, s25, {FO_OFF}")
    a.salu("s_lshl_b32 s26, s24, 5")
    a.salu("s_mul_i32 s27, s26, 5120")
    a.salu("s_lshl_b32 s28, s26, 10")
    D = 4
    def issue_A(k):
        slot = k % D
        a.salu(f"s_add_u32 s29, s27, {k*5120}")
        for nt_ in range(5):
            d = RING + 36*slot + 4*nt_
            if nt_ < 4:
                a.vmem_load(f"buffer_load_dwordx4 {vr(d,4)}, v{VL16}, s[12:15], s29 offen offset:{nt_*1024} sc1", range(d, d+4), [VL16], tag=('A', k))
            else:
                a.vmem_load(f"buffer_load_dwordx4 {vr(d,4)}, v{VL16B}, s[12:15], s29 offen sc1", range(d, d+4), [VL16B], tag=('A', k))
    def issue_B(k):
        slot = k % D
        a.salu(f"s_add_u32 s30, s28, {k*1024}")
        for qt in range(4):
            d = RING + 36*slot + 20 + 4*qt
            a.vmem_load(f"buffer_load_dwordx4 {vr(d,4)}, v{VOF+qt}, s[16:19], s30 offen sc1", range(d, d+4), [VOF+qt], tag=('B', k))
    for rnd in range(2):
        k0 = 16 * rnd
        for k in range(k0, k0 + D): issue_A(k)
        if rnd == 1: a.salu("s_add_u32 s25, s25, 128")
        spin(a, VP, VFL, "s[8:11]", "s25", "s94")
        st(4 + 2*rnd)
        for k in range(k0, k0 + D): issue_B(k)
        for k in range(k0, k0 + 16):
            slot = k % D
            a.wait_vm(('B', k))
            for nt_ in range(5):
                for qt in range(4):
                    d = ACC + 4*(nt_*4 + qt)
                    a.mfma('16', d, RING + 36*slot + 4*nt_, RING + 36*slot + 20 + 4*qt, None if k == 0 else d)
            if k + D < k0 + 16:
                issue_A(k + D); issue_B(k + D)
        st(5 + 2*rnd)
    a.salu("s_mul_i32 s27, s24, 20480")
    a.valu(f"v_add_u32 v11, s27, v{VL16}", [11], [VL16])
    for tile in range(20):
        d = ACC + 4*tile
        a.ds_write(f"ds_write_b128 v11, {vr(d,4)} offset:{tile*1024}", [11] + list(range(d, d+4)))
        if len(a.lgq) >= 12: a.wait_lg_all()
    a.wait_lg_all()
    a.barrier()
    a.salu("s_lshl_b32 s29, s24, 10")
    a.valu(f"v_add_u32 v11, s29, v{VL16}", [11], [VL16])
    a.valu(f"v_add_u32 v12, 0xa000, v11", [12], [11])
    for nt_ in range(5):
        for src in range(4):
            d = RING + 16*nt_ + 4*src
            ar = 11 if src < 2 else 12
            a.ds_read(f"ds_read_b128 {vr(d,4)}, v{ar} offset:{(src%2)*20480 + nt_*4096}", range(d, d+4), [ar], tag=('R', nt_))
        if nt_ == 2: a.wait_lg_all()
    a.wait_lg_all()
    a.valu("v_lshl_add_u32 v10, v2, 4, v4", [10], [2, 4])
    a.valu("v_mul_u32_u24 v10, 0xa00, v10", [10], [10])
    a.valu(f"v_lshl_add_u32 v{VST}, v3, 3, v10", [VST], [3, 10])
    for nt_ in range(5):
        d = RING + 16*nt_
        for k in range(4):
            a.valu(f"v_add_f32 v{d+k}, v{d+k}, v{d+4+k}", [d+k], [d+k, d+4+k])
            a.valu(f"v_add_f32 v{d+8+k}, v{d+8+k}, v{d+12+k}", [d+8+k], [d+8+k, d+12+k])
        for k in range(4):
            a.valu(f"v_add_f32 v{d+k}, v{d+k}, v{d+8+k}", [d+k], [d+k, d+8+k])
        a.valu(f"v_cvt_pk_bf16_f32 v{d+4}, v{d}, v{d+1}", [d+4], [d, d+1])
        a.valu(f"v_cvt_pk_bf16_f32 v{d+5}, v{d+2}, v{d+3}", [d+5], [d+2, d+3])
        a.vmem_store(f"buffer_store_dwordx2 {vr(d+4,2)}, v{VST}, s[20:23], 0 offen offset:{nt_*32}", [VST], [d+4, d+5], tag='st')
    st(8)
    a.salu("s_endpgm")

def merge(a, jobs, valus, PD, NB, lead=0):
    n = len(jobs); vi = 0
    for i in range(-PD, n):
        if i + PD < n:
            jobs[i + PD][0]((i + PD) % NB, ('job', i + PD))
        if i == -1:
            for _ in range(min(lead, len(valus) - vi)):
                valus[vi](); vi += 1
        if i >= 0:
            a.wait_lg(('job', i))
            jobs[i][1](i % NB)
            rem = len(valus) - vi
            k = -(-rem // (n - i))
            for _ in range(k):
                valus[vi](); vi += 1
    while vi < len(valus):
        valus[vi](); vi += 1

def gen_S(a):
    QFS = [16, 48]
    OA, SB, FB = 80, [144, 176], 208
    KA, VA, VKV = 232, 240, 248
    M, L, AL, MC, T0, T1, T2, T3 = 252, 253, 4, 6, 7, 8, 9, 10
    VO, VQ, VP, VT = 254, 255, 11, 12
    NB = 6
    SLOT = 16384
    a.label("L_stream")
    a.salu("s_setprio 3")
    st = Stamper(a, 47, 15)
    st.setup()
    st(0)
    a.salu("s_lshl_b32 s29, s35, 5"); a.salu("s_add_u32 s29, s29, s37"); a.salu("s_lshl_b32 s29, s29, 17")
    srd_from(a, 20, "s42", "s43", "s29", 5 * 131072)
    srd_from(a, 96, "s44", "s45", "s29", 5 * 131072)
    a.salu("s_lshl_b32 s29, s39, 15")
    srd_from(a, 16, "s72", "s73", "s29", 5 * 32768, QWS_OFF)
    a.salu("s_lshl_b32 s92, s24, 12")
    for jj in range(4):
        a.valu(f"v_lshl_or_b32 v10, v3, 2, {jj}", [10], [3])
        a.valu("v_xor_b32 v10, v4, v10", [10], [4, 10])
        a.valu("v_lshlrev_b32 v10, 4, v10", [10], [10])
        a.valu(f"v_lshl_add_u32 v{VKV+jj}, v3, 8, v10", [VKV+jj], [3, 10])
    nt = " nt" if KV_NT else ""
    PERM = [3, 1, 4, 2, 0]
    seq = [('K', 0)]
    for i in range(15): seq += [('K', i + 1), ('V', i)]
    seq += [('V', 15)]
    def issue_KV(p):
        kind, j = seq[p]
        slot = PERM[p % 5]
        srd = "s[20:23]" if kind == 'K' else "s[96:99]"
        a.salu(f"s_add_u32 m0, s92, {slot*SLOT}", m0=True)
        a.salu(f"s_add_u32 s29, s92, {(j>>3)*4*131072 + (j&7)*16384}")
        for jj in range(4):
            a.vmem_dma(f"buffer_load_dwordx4 v{VKV+jj}, {srd}, s29 offen offset:{jj*1024}{nt} lds", [VKV+jj], tag=('KV', p))
    R = dict(OA=OA, FB=FB, XF=SB[0], WA=VA, VW=SB[1], VX=SB[1]+2, XA=SB[1]+6, TMP=SB[1]+10)
    def late(s_):
        if s_ == 16: issue_KV(0)
        if s_ == 17: issue_KV(1)
        if s_ == 18: issue_KV(2)
        if s_ == 19 and AHEAD >= 3: issue_KV(3)
    qproj(a, R, 0, st, late)
    q_to_bf16(a, OA, QFS[0])
    st.vt = 14
    a.salu(f"s_mov_b32 s30, 0x{f32bits(CSCALE):08x}")
    a.salu("s_lshl_b32 s29, s38, 20")
    srd_from(a, 4, "s72", "s73", "s29", 1 << 20, OWS_OFF)
    a.valu("v_and_b32 v10, 3, v6", [10], [6])
    a.valu("v_bfe_u32 v11, v6, 2, 2", [11], [6])
    a.valu("v_lshl_or_b32 v10, v10, 2, v11", [10], [10, 11])
    a.valu("v_xor_b32 v10, v5, v10", [10], [5, 10])
    a.valu("v_lshlrev_b32 v10, 4, v10", [10], [10])
    a.valu("v_lshl_add_u32 v10, v6, 8, v10", [10], [6, 10])
    for s_ in range(8):
        a.valu(f"v_xor_b32 v{KA+s_}, {s_*32}, v10", [KA+s_], [10])
    a.valu("v_lshrrev_b32 v10, 1, v8", [10], [8])
    a.valu("v_lshl_or_b32 v10, v9, 1, v10", [10], [9, 10])
    a.valu("v_and_b32 v11, 1, v8", [11], [8])
    for u in range(2):
        a.valu(f"v_or_b32 v12, {2*u}, v5", [12], [5])
        a.valu("v_xor_b32 v13, v10, v12", [13], [10, 12])
        a.valu("v_lshlrev_b32 v13, 4, v13", [13], [13])
        a.valu("v_lshl_add_u32 v13, v11, 3, v13", [13], [11, 13])
        a.valu("v_lshl_add_u32 v14, v12, 2, v7", [14], [12, 7])
        a.valu("v_lshl_add_u32 v13, v14, 8, v13", [13], [14, 13])
        a.valu("v_lshl_add_u32 v13, v7, 6, v13", [13], [7, 13])
        for t in range(4):
            a.valu(f"v_xor_b32 v{VA+2*t+u}, {t*64}, v13", [VA+2*t+u], [13])
    a.valu("v_lshl_add_u32 v10, v2, 1, v9", [10], [2, 9])
    a.valu("v_lshlrev_b32 v10, 17, v10", [10], [10])
    a.valu("v_lshl_add_u32 v11, v5, 4, v4", [11], [5, 4])
    a.valu(f"v_lshl_add_u32 v{VO}, v11, 4, v10", [VO], [11, 10])
    a.valu("v_lshlrev_b32 v10, 4, v1", [10], [1])
    a.valu(f"v_lshl_add_u32 v{VQ}, v2, 13, v10", [VQ], [2, 10])
    a.salu("s_lshl_b32 s25, s39, 6")
    a.salu("s_lshl_b32 s26, s38, 8"); a.salu("s_lshl_b32 s29, s34, 4"); a.salu("s_add_u32 s26, s26, s29")
    a.salu("s_lshl_b32 s29, s36, 2"); a.salu("s_add_u32 s26, s26, s29"); a.salu(f"s_add_u32 s26, s26, {FO_OFF}")
    st(1)
    a.vmem_load(f"buffer_load_dword v{VT}, v15, s[84:87], 0 offen sc1", [VT], [15], tag='nonce')
    def load_Q(task, srd="s[16:19]", sc=" sc1"):
        qf = QFS[task]
        a.salu(f"s_mov_b32 s29, {task*4*32768}")
        a.salu(f"s_mov_b32 s28, {task*4*32768+4096}")
        for s_ in range(8):
            so = "s29" if s_ < 4 else "s28"
            a.vmem_load(f"buffer_load_dwordx4 {vr(qf+4*s_,4)}, v{VQ}, {srd}, {so} offen offset:{(s_%4)*1024}{sc}", range(qf+4*s_, qf+4*s_+4), [VQ], tag=('Q', task))

    base = {'K': 0, 'V': 0}
    def rebase(which, slot):
        regs = range(KA, KA+8) if which == 'K' else range(VA, VA+8)
        need = base[which]
        if slot == 4: need = SLOT
        if slot == 0: need = 0
        if need != base[which]:
            for r in regs:
                if need > base[which]:
                    a.valu(f"v_add_u32 v{r}, {need-base[which]}, v{r}", [r], [r])
                else:
                    a.valu(f"v_subrev_u32 v{r}, {base[which]-need}, v{r}", [r], [r])
            base[which] = need
        return slot * SLOT - base[which]

    def V(text, dst, src, **kw):
        return lambda: a.valu(text, dst, src, **kw)

    def part1(j):
        SS = SB[j % 2]; T = j & 7
        o = []
        for c_, tr in ((0, T0), (16, T1)):
            o.append(V(f"v_max3_f32 v{tr}, v{SS+c_}, v{SS+c_+1}, v{SS+c_+2}", [tr], [SS+c_, SS+c_+1, SS+c_+2]))
        for k in range(3, 15, 2):
            for c_, tr in ((0, T0), (16, T1)):
                o.append(V(f"v_max3_f32 v{tr}, v{tr}, v{SS+c_+k}, v{SS+c_+k+1}", [tr], [tr, SS+c_+k, SS+c_+k+1]))
        o.append(V(f"v_max3_f32 v{T0}, v{T0}, v{T1}, v{SS+15}", [T0], [T0, T1, SS+15]))
        o.append(V(f"v_max_f32 v{T0}, v{T0}, v{SS+31}", [T0], [T0, SS+31]))
        o.append(V(f"v_mov_b32 v{T1}, v{T0}", [T1], [T0]))
        o.append(V(f"v_permlane32_swap_b32 v{T0}, v{T1}", [T0, T1], [T0, T1], kind='permlane'))
        if T == 0:
            o.append(V(f"v_max_f32 v{M}, v{T0}, v{T1}", [M], [T0, T1]))
        else:
            o.append(V(f"v_max3_f32 v{T2}, v{T0}, v{T1}, v{M}", [T2], [T0, T1, M]))
            o.append(V(f"v_sub_f32 v{T3}, v{M}, v{T2}", [T3], [M, T2]))
            o.append(V(f"v_mul_f32 v{T3}, s30, v{T3}", [T3], [T3]))
            o.append(V(f"v_exp_f32 v{AL}, v{T3}", [AL], [T3], trans=True))
            o.append(V(f"v_mov_b32 v{M}, v{T2}", [M], [T2]))
        o.append(V(f"v_mul_f32 v{MC}, s30, v{M}", [MC], [M]))
        for i in range(32):
            o.append(V(f"v_fma_f32 v{SS+i}, v{SS+i}, s30, -v{MC}", [SS+i], [SS+i, MC]))
        return o

    def part2(j):
        SS = SB[j % 2]; T = j & 7
        o = []
        resc = []
        if T > 0:
            for i in range(0, 64, 2):
                resc.append(V(f"v_pk_mul_f32 {vr(OA+i,2)}, {vr(OA+i,2)}, {vr(AL,2)} op_sel_hi:[1,0]", [OA+i, OA+i+1], [OA+i, OA+i+1, AL]))
        for i in range(32):
            o.append(V(f"v_exp_f32 v{SS+i}, v{SS+i}", [SS+i], [SS+i], trans=True))
            if resc: o.append(resc.pop(0))
        for c_, tr in ((0, T0), (8, T1), (16, T2), (24, T3)):
            o.append(V(f"v_add_f32 v{tr}, v{SS+c_}, v{SS+c_+1}", [tr], [SS+c_, SS+c_+1]))
        for k in range(2, 8):
            for c_, tr in ((0, T0), (8, T1), (16, T2), (24, T3)):
                o.append(V(f"v_add_f32 v{tr}, v{tr}, v{SS+c_+k}", [tr], [tr, SS+c_+k]))
        o.append(V(f"v_add_f32 v{T0}, v{T0}, v{T1}", [T0], [T0, T1]))
        o.append(V(f"v_add_f32 v{T2}, v{T2}, v{T3}", [T2], [T2, T3]))
        if T == 0:
            o.append(V(f"v_add_f32 v{L}, v{T0}, v{T2}", [L], [T0, T2]))
        else:
            o.append(V(f"v_add_f32 v{T0}, v{T0}, v{T2}", [T0], [T0, T2]))
            o.append(V(f"v_fma_f32 v{L}, v{L}, v{AL}, v{T0}", [L], [L, AL, T0]))
        for i in range(16):
            o.append(V(f"v_cvt_pk_bf16_f32 v{SS+i}, v{SS+2*i}, v{SS+2*i+1}", [SS+i], [SS+2*i, SS+2*i+1]))
        return o

    def epilogue(task):
        TMP = SB[1]
        a.valu(f"v_mov_b32 v{T0}, v{L}", [T0], [L])
        a.valu(f"v_mov_b32 v{T1}, v{L}", [T1], [L])
        a.valu(f"v_permlane32_swap_b32 v{T0}, v{T1}", [T0, T1], [T0, T1], kind='permlane')
        a.valu(f"v_add_f32 v{T0}, v{T0}, v{T1}", [T0], [T0, T1])
        a.valu(f"v_rcp_f32 v{AL}, v{T0}", [AL], [T0], trans=True)
        a.salu(f"s_add_u32 s29, s37, {4*task}")
        a.salu("s_lshl_b32 s29, s29, 12")
        for t in range(4):
            for i in range(0, 16, 2):
                r = OA + 16*t + i
                a.valu(f"v_pk_mul_f32 {vr(r,2)}, {vr(r,2)}, {vr(AL,2)} op_sel_hi:[1,0]", [r, r+1], [r, r+1, AL])
            for piece in range(2):
                d = TMP + 8*t + 4*piece
                for k, rr in enumerate((4*piece, 4*piece+2, 8+4*piece, 8+4*piece+2)):
                    r = OA + 16*t + rr
                    a.valu(f"v_cvt_pk_bf16_f32 v{d+k}, v{r}, v{r+1}", [d+k], [r, r+1])
                a.vmem_store(f"buffer_store_dwordx4 {vr(d,4)}, v{VO}, s[4:7], s29 offen offset:{t*1024+piece*512} sc1", [VO], range(d, d+4), tag='O')

    POLL_P, CHECK_P, FLAG_P = 4, 9, 22
    for p in range(32):
        kind, j = seq[p]
        slot = PERM[p % 5]
        off = rebase(kind, slot)
        if kind == 'K' and j == 8:
            ls = a.newlabel("QS")
            a.salu("s_cmp_eq_u32 s93, 0")
            a.salu(f"s_cbranch_scc1 {ls}")
            saved = list(a.vmq)
            a.salu("s_add_u32 s25, s25, 256")
            spin(a, VP, 15, "s[8:11]", "s25", "s94")
            load_Q(1)
            a.wait_vm_all()
            a.label(ls)
            a.vmq[:] = saved
            a.nop(2)
            a.wait_vm(('Q', 1))
        a.wait_vm(('KV', p))
        a.barrier()
        if p == 0 and AHEAD >= 4: issue_KV(4)
        if p >= 1 and p + AHEAD < 32: issue_KV(p + AHEAD)
        if p == POLL_P - 1:
            a.wait_vm('nonce')
            a.valu(f"v_readfirstlane_b32 s94, v{VT}", [], [VT], sdst=['s94'], kind='readlane')
            a.nop(4)
            ln = a.newlabel("NR")
            a.salu("s_cmp_lg_u32 s94, 0")
            a.salu(f"s_cbranch_scc1 {ln}")
            saved = list(a.vmq)
            get_nonce(a, VP)
            a.label(ln)
            a.vmq[:] = saved
            a.nop(2)
        if p == POLL_P:
            a.salu("s_add_u32 s29, s25, 256")
            a.vmem_load(f"buffer_load_dword v{VP}, v15, s[8:11], s29 offen sc1", [VP], [15], tag='poll')
        if p == CHECK_P:
            assert 'poll' not in a.vmq
            a.valu(f"v_readfirstlane_b32 s93, v{VP}", [], [VP], sdst=['s93'], kind='readlane')
            a.nop(4)
            lr, lj = a.newlabel("QR"), a.newlabel("QJ")
            a.salu("s_cmp_eq_u32 s93, s94")
            a.salu(f"s_cbranch_scc1 {lr}")
            saved = list(a.vmq); t0 = a.t
            a.salu("s_mov_b32 s93, 1")
            load_Q(1, srd="s[20:23]", sc="")
            a.salu(f"s_branch {lj}")
            a.vmq[:] = saved
            a.label(lr)
            a.salu("s_mov_b32 s93, 0")
            load_Q(1)
            a.label(lj)
            a.t = t0 + 4
        if p == FLAG_P:
            assert 'O' not in a.vmq
            a.valu(f"v_mov_b32 v{VP}, s94", [VP], [])
            a.vmem_store(f"buffer_store_dword v{VP}, v15, s[8:11], s26 offen sc1", [15], [VP], tag='F')
        st(3 + p)
        jobs = []
        if SNOC: continue
        if kind == 'K':
            QF = QFS[j >> 3]; SS = SB[j % 2]
            for kt in range(2):
                for s_ in range(8):
                    def rd(buf, tag, kt=kt, s_=s_):
                        d = FB + 4*buf
                        a.ds_read(f"ds_read_b128 {vr(d,4)}, v{KA+s_} offset:{off+kt*8192}", range(d, d+4), [KA+s_], tag=tag)
                    def mm(buf, kt=kt, s_=s_, QF=QF, SS=SS):
                        a.mfma('32', SS+16*kt, FB+4*buf, QF+4*s_, None if s_ == 0 else SS+16*kt)
                    jobs.append((rd, mm))
            merge(a, jobs, part2(j - 1) if j > 0 else [], 5, NB, lead=8)
            if j == 0:
                for f in part1(0): f()
        else:
            if j == 15:
                for f in part2(15): f()
            PP = SB[j % 2]
            for jq in range(4):
                for t in range(4):
                    def rd(buf, tag, jq=jq, t=t):
                        for u in range(2):
                            d = FB + 4*buf + 2*u
                            a.ds_read(f"ds_read_b64_tr_b16 {vr(d,2)}, v{VA+2*t+u} offset:{off+jq*4096}", [d, d+1], [VA+2*t+u], tag=tag)
                    def mm(buf, jq=jq, t=t, j=j, PP=PP):
                        first = ((j & 7) == 0 and jq == 0)
                        a.mfma('32', OA+16*t, FB+4*buf, PP+4*jq, None if first else OA+16*t)
                    jobs.append((rd, mm))
            merge(a, jobs, part1(j + 1) if j < 15 else [], 4, NB, lead=6)
            if (j & 7) == 7:
                epilogue(j >> 3)
    a.wait_vm_all()
    a.barrier()
    a.salu("s_add_u32 s26, s26, 128")
    a.valu(f"v_mov_b32 v{VP}, s94", [VP], [])
    a.vmem_store(f"buffer_store_dword v{VP}, v15, s[8:11], s26 offen sc1", [15], [VP], tag='F')
    st(35)
    a.label("L_done")
    a.salu("s_endpgm")

def main(out):
    hdr = f"""; Generated by gen/gen_v4.py (hand-written generator).
; @launch grid=(512,1,1) block=(256,1,1) lds=81920
.amdgcn_target "amdgcn-amd-amdhsa--gfx950"
.text
.globl {KNAME}
.p2align 8
.type {KNAME},@function
"""
    a = Asm()
    common_prologue(a)
    import copy
    save = (a.t, dict(a.w_valu), dict(a.w_sgpr_valu))
    gen_G(a)
    a.t = save[0]; a.w_valu = save[1]; a.w_sgpr_valu = save[2]; a.w_trans = {}; a.w_mfma = {}; a.rc_mfma = {}; a.st_data = {}; a.vmq = []; a.lgq = []
    gen_S(a)
    tail = f""".section .rodata,"a"
.p2align 6
.amdhsa_kernel {KNAME}
  .amdhsa_next_free_vgpr 256
  .amdhsa_next_free_sgpr 102
  .amdhsa_accum_offset 256
  .amdhsa_group_segment_fixed_size 0
  .amdhsa_kernarg_size 104
  .amdhsa_user_sgpr_count 2
  .amdhsa_user_sgpr_kernarg_segment_ptr 1
  .amdhsa_system_sgpr_workgroup_id_x 1
.end_amdhsa_kernel
"""
    open(out, "w").write(hdr + a.text() + tail)

if __name__ == "__main__":
    main(sys.argv[1] if len(sys.argv) > 1 else f"cdna_kernels/{NAME}.s")
```

```python
import sys, struct, os, math
sys.path.insert(0, 'gen')
from asmlib import *

NAME = "concat_heads__gqa_block_cached__mha_block_cached__near_ridge"
CSCALE = (128 ** -0.5) * math.log2(math.e)
def f32bits(x): return struct.unpack('<I', struct.pack('<f', x))[0]
E = lambda k, d: int(os.environ.get(k, str(d)))
STAMP = E("STAMP", 0); TOUCH = E("TOUCH", 1); AHEAD = E("AHEAD", 4); PRIO = E("PRIO", 1)
OST = os.environ.get("OST", "")
OWS_OFF, WOP_OFF, STAMP_OFF = 0, 32 << 20, 64 << 20

def srd_from(a, d, base_lo, base_hi, off_sreg, size, const_off=0):
    a.salu(f"s_add_u32 s{d}, {base_lo}, {off_sreg}")
    a.salu(f"s_addc_u32 s{d+1}, {base_hi}, 0")
    if const_off:
        a.salu(f"s_add_u32 s{d}, s{d}, {const_off}")
        a.salu(f"s_addc_u32 s{d+1}, s{d+1}, 0")
    a.salu(f"s_and_b32 s{d+1}, s{d+1}, 0xffff")
    a.salu(f"s_mov_b32 s{d+2}, {size}")
    a.salu(f"s_mov_b32 s{d+3}, 0x00020000")

class Stamper:
    def __init__(self, a, vtmp, vzero, wshift=2):
        self.a, self.vt, self.vz, self.ws = a, vtmp, vzero, wshift
    def setup(self):
        a = self.a
        if not STAMP: return
        a.salu("s_mov_b32 s78, 0")
        srd_from(a, 80, "s72", "s73", "s78", 1 << 20, STAMP_OFF)
        a.salu(f"s_lshl_b32 s78, s2, {self.ws}"); a.salu("s_add_u32 s78, s78, s24"); a.salu("s_lshl_b32 s78, s78, 8")
    def __call__(self, idx):
        a = self.a
        if not STAMP: return
        a.wait_lg_all()
        a.salu("s_memrealtime s[90:91]")
        a.salu("s_waitcnt lgkmcnt(0)")
        a.valu(f"v_mov_b32 v{self.vt}, s90", [self.vt], [])
        a.vmem_store(f"buffer_store_dword v{self.vt}, v{self.vz}, s[80:83], s78 offen offset:{idx*4}", [self.vz], [self.vt], tag='stamp')

def merge(a, jobs, valus, PD, NB, lead=0, hook=None):
    n = len(jobs); vi = 0
    for i in range(-PD, n):
        if i + PD < n:
            if hook: hook(i + PD)
            jobs[i + PD][0]((i + PD) % NB, ('job', i + PD))
        if i == -1:
            for _ in range(min(lead, len(valus) - vi)):
                valus[vi](); vi += 1
        if i >= 0:
            a.wait_lg(('job', i))
            jobs[i][1](i % NB)
            rem = len(valus) - vi
            k = -(-rem // (n - i))
            for _ in range(k):
                valus[vi](); vi += 1
    while vi < len(valus):
        valus[vi](); vi += 1

def kernargs(a):
    a.salu("s_load_dwordx16 s[48:63], s[0:1], 0")
    a.salu("s_load_dwordx8 s[64:71], s[0:1], 64")
    a.salu("s_load_dwordx2 s[72:73], s[0:1], 96")

def lane_consts(a):
    a.valu("v_and_b32 v1, 63, v0", [1], [0])
    a.valu("v_lshrrev_b32 v2, 6, v0", [2], [0])
    a.valu("v_readfirstlane_b32 s24, v2", [], [2], sdst=['s24'], kind='readlane')
    a.valu("v_lshrrev_b32 v3, 4, v1", [3], [1])
    a.valu("v_and_b32 v4, 15, v1", [4], [1])
    a.valu("v_lshrrev_b32 v5, 5, v1", [5], [1])
    a.valu("v_and_b32 v6, 31, v1", [6], [1])
    a.valu("v_bfe_u32 v7, v1, 2, 2", [7], [1])
    a.valu("v_and_b32 v8, 3, v1", [8], [1])
    a.valu("v_and_b32 v9, 1, v3", [9], [3])
    a.valu("v_mov_b32 v15, 0", [15], [])

def gen_attn(a):
    QF = 16
    OA, SB, FB = 48, [112, 144], 176
    KA, VA, VKV = 200, 208, 216
    M, L, AL, MC, T0, T1, T2, T3 = 220, 221, 222, 224, 225, 226, 227, 228
    VO = 229
    NB = 6
    SLOT = 16384
    NW = 4
    XB = NW * 8192
    a.label("attn_kernel")
    a.salu("s_cmp_ge_u32 s2, 512")
    a.salu("s_cbranch_scc1 attn_done")
    kernargs(a)
    a.salu("s_and_b32 s31, s2, 7")
    a.salu("s_lshr_b32 s32, s2, 3")
    a.salu("s_lshr_b32 s33, s31, 2")
    a.salu("s_and_b32 s34, s31, 3")
    a.salu("s_and_b32 s35, s32, 7")
    a.salu("s_lshr_b32 s36, s32, 3")
    a.salu("s_lshl_b32 s37, s34, 3")
    a.salu("s_add_u32 s37, s37, s36")
    a.salu("s_lshl_b32 s38, s33, 3")
    a.salu("s_add_u32 s38, s38, s35")
    lane_consts(a)
    if PRIO:
        lp = a.newlabel("PR")
        a.salu("s_cmp_ge_u32 s2, 256")
        a.salu(f"s_cbranch_scc1 {lp}")
        a.salu("s_setprio 2")
        a.label(lp)
    for jj in range(4):
        a.valu(f"v_lshl_or_b32 v10, v3, 2, {jj}", [10], [3])
        a.valu("v_xor_b32 v10, v4, v10", [10], [4, 10])
        a.valu("v_lshlrev_b32 v10, 4, v10", [10], [10])
        a.valu(f"v_lshl_add_u32 v{VKV+jj}, v3, 8, v10", [VKV+jj], [3, 10])
    XF, WA, VW, VX, XA, TMP = SB[0], VA, SB[1], SB[1]+2, SB[1]+6, SB[1]+10
    for jj in range(2):
        a.valu(f"v_lshl_or_b32 v10, v2, 1, {jj}", [10], [2])
        a.valu("v_and_b32 v10, 3, v10", [10], [10])
        a.valu("v_lshl_or_b32 v10, v3, 2, v10", [10], [3, 10])
        a.valu("v_xor_b32 v10, v4, v10", [10], [4, 10])
        a.valu("v_lshlrev_b32 v10, 4, v10", [10], [10])
        a.valu("v_lshl_add_u32 v10, v3, 13, v10", [10], [3, 10])
        a.valu(f"v_add_u32 v{VW+jj}, {jj*(4*8192-1024)}, v10", [VW+jj], [10])
    a.valu("v_lshrrev_b32 v11, 3, v1", [11], [1])
    a.valu("v_mul_u32_u24 v11, 0x500, v11", [11], [11])
    a.valu("v_and_b32 v12, 7, v1", [12], [1])
    for jj in range(4):
        a.valu(f"v_add_u32 v10, {(4*jj) & 7}, v3", [10], [3])
        a.valu("v_xor_b32 v10, v12, v10", [10], [12, 10])
        a.valu("v_lshl_add_u32 v10, v10, 4, v11", [10], [10, 11])
        a.valu(f"v_add_u32 v{VX+jj}, {jj*(8*1280-1024)}, v10", [VX+jj], [10])
    a.salu("s_waitcnt lgkmcnt(0)")
    a.salu("s_cmp_eq_u32 s33, 1")
    a.salu("s_cselect_b64 s[40:41], s[58:59], s[48:49]")
    a.salu("s_cselect_b64 s[42:43], s[60:61], s[50:51]")
    a.salu("s_cselect_b64 s[44:45], s[62:63], s[52:53]")
    a.salu("s_cselect_b64 s[46:47], s[64:65], s[54:55]")
    a.salu("s_cselect_b64 s[74:75], s[66:67], s[56:57]")
    a.salu("s_mul_i32 s29, s35, 163840")
    srd_from(a, 4, "s40", "s41", "s29", 163840)
    a.salu("s_lshl_b32 s93, s37, 8")
    a.salu("s_sub_u32 s30, 5242880, s93")
    srd_from(a, 12, "s46", "s47", "s93", "s30")
    a.salu("s_lshl_b32 s29, s35, 5"); a.salu("s_add_u32 s29, s29, s37"); a.salu("s_lshl_b32 s29, s29, 17")
    srd_from(a, 20, "s42", "s43", "s29", 131072)
    srd_from(a, 96, "s44", "s45", "s29", 131072)
    a.salu("s_lshl_b32 s26, s24, 11")
    a.salu("s_lshl_b32 s27, s24, 16")
    a.salu("s_lshl_b32 s92, s24, 12")
    a.salu(f"s_add_u32 s28, s92, {XB}")
    a.salu("s_mul_i32 s25, s24, 40960")
    st = Stamper(a, QF + 31, 15)
    st.setup()
    st(0)

    seq = [('K', 0)]
    for i in range(7): seq += [('K', i + 1), ('V', i)]
    seq += [('V', 7)]
    NP = len(seq)
    PERM = [4, 2, 0, 3, 1]
    def issue_KV(p):
        kind, j = seq[p]
        slot = PERM[p % 5]
        srd = "s[20:23]" if kind == 'K' else "s[96:99]"
        a.salu(f"s_add_u32 m0, s92, {slot*SLOT}", m0=True)
        a.salu(f"s_add_u32 s29, s92, {j*16384}")
        for jj in range(4):
            a.vmem_dma(f"buffer_load_dwordx4 v{VKV+jj}, {srd}, s29 offen offset:{jj*1024} nt lds", [VKV+jj], tag=('KV', p))
    def issue_W(s_):
        buf = s_ % NW
        a.salu(f"s_add_u32 m0, s26, {buf*8192}", m0=True)
        a.salu(f"s_add_u32 s29, s27, {s_*32*8192}")
        for jj in range(2):
            a.vmem_dma(f"buffer_load_dwordx4 v{VW+jj}, s[12:15], s29 offen offset:{jj*1024} nt lds", [VW+jj], tag=('W', s_))
    def issue_X(c):
        a.salu(f"s_add_u32 m0, s28, {(c%2)*16384}", m0=True)
        a.salu(f"s_add_u32 s29, s25, {c*128}")
        for jj in range(4):
            a.vmem_dma(f"buffer_load_dwordx4 v{VX+jj}, s[4:7], s29 offen offset:{jj*1024} lds", [VX+jj], tag=('X', c))
    def read_X(c):
        a.wait_vm(('X', c))
        for sp in range(4):
            d = XF + 16*(c % 2) + 4*sp
            a.ds_read(f"ds_read_b128 {vr(d,4)}, v{XA+sp} offset:{(c%2)*16384}", range(d, d+4), [XA+sp], tag=('xf', c))

    issue_X(0); issue_W(0); issue_W(1); issue_X(1)
    for s_ in range(2, NW): issue_W(s_)
    if TOUCH:
        a.salu("s_lshl_b32 s29, s36, 2"); a.salu("s_add_u32 s29, s29, s24"); a.salu("s_mul_i32 s29, s29, 5120")
        a.valu("v_lshlrev_b32 v10, 7, v1", [10], [1])
        a.valu("v_cmp_gt_u32 vcc, 40, v1", [], [1], sdst=['vcc'])
        a.valu("v_mov_b32 v12, 0x7fffffff", [12], [])
        a.valu("v_cndmask_b32 v10, v12, v10, vcc", [10], [10, 12], ssrc=['vcc'])
        a.vmem_load(f"buffer_load_dword v{TMP}, v10, s[4:7], s29 offen", [TMP], [10], tag='pf')
        a.salu("s_mul_i32 s29, s35, 80"); a.salu("s_mul_i32 s30, s24, 20"); a.salu("s_add_u32 s29, s29, s30")
        a.salu("s_lshl_b32 s29, s29, 13")
        a.valu("v_lshrrev_b32 v10, 1, v1", [10], [1])
        a.valu("v_lshlrev_b32 v10, 13, v10", [10], [10])
        a.valu("v_and_b32 v11, 1, v1", [11], [1])
        a.valu("v_lshl_add_u32 v10, v11, 7, v10", [10], [11, 10])
        a.valu("v_cndmask_b32 v10, v12, v10, vcc", [10], [10, 12], ssrc=['vcc'])
        a.vmem_load(f"buffer_load_dword v{TMP+1}, v10, s[12:15], s29 offen nt", [TMP+1], [10], tag='pf')
    issue_KV(0)
    a.valu("v_bfe_u32 v10, v6, 1, 3", [10], [6])
    a.valu("v_xor_b32 v10, v5, v10", [10], [5, 10])
    a.valu("v_lshlrev_b32 v10, 4, v10", [10], [10])
    a.valu("v_lshl_add_u32 v10, v6, 7, v10", [10], [6, 10])
    a.valu("v_lshl_add_u32 v10, v2, 12, v10", [10], [2, 10])
    a.valu(f"v_add_u32 v10, {XB}, v10", [10], [10])
    for sp in range(4):
        a.valu(f"v_xor_b32 v{XA+sp}, {sp*32}, v10", [XA+sp], [10])
    a.valu("v_and_b32 v10, 1, v8", [10], [8])
    a.valu("v_lshl_or_b32 v10, v9, 1, v10", [10], [9, 10])
    a.valu("v_lshrrev_b32 v11, 1, v8", [11], [8])
    for u in range(2):
        a.valu(f"v_lshl_or_b32 v12, v5, 1, {u}", [12], [5])
        a.valu("v_xor_b32 v13, v10, v12", [13], [10, 12])
        a.valu("v_lshlrev_b32 v13, 4, v13", [13], [13])
        a.valu("v_lshl_add_u32 v13, v11, 3, v13", [13], [11, 13])
        a.valu("v_lshl_add_u32 v14, v12, 2, v7", [14], [12, 7])
        a.valu("v_lshl_add_u32 v13, v14, 8, v13", [13], [14, 13])
        a.valu("v_lshl_add_u32 v13, v7, 6, v13", [13], [7, 13])
        for t in range(4):
            a.valu(f"v_xor_b32 v{WA+2*t+u}, {t*64}, v13", [WA+2*t+u], [13])
    a.valu("v_and_b32 v10, 3, v6", [10], [6])
    a.valu("v_bfe_u32 v11, v6, 2, 2", [11], [6])
    a.valu("v_lshl_or_b32 v10, v10, 2, v11", [10], [10, 11])
    a.valu("v_xor_b32 v10, v5, v10", [10], [5, 10])
    a.valu("v_lshlrev_b32 v10, 4, v10", [10], [10])
    a.valu("v_lshl_add_u32 v10, v6, 8, v10", [10], [6, 10])
    for s_ in range(8):
        a.valu(f"v_xor_b32 v{KA+s_}, {s_*32}, v10", [KA+s_], [10])
    a.valu("v_lshl_add_u32 v10, v2, 1, v9", [10], [2, 9])
    a.valu("v_lshlrev_b32 v10, 17, v10", [10], [10])
    a.valu("v_lshl_add_u32 v11, v5, 4, v4", [11], [5, 4])
    a.valu(f"v_lshl_add_u32 v{VO}, v11, 4, v10", [VO], [11, 10])
    read_X(0)
    jobs = []
    for ks in range(40):
        s_ = ks // 2; sp2 = ks % 2; c = ks // 4; sp = ks % 4
        for t in range(4):
            def rd(buf, tag, s_=s_, sp2=sp2, t=t):
                for u in range(2):
                    d = FB + 4*buf + 2*u
                    a.ds_read(f"ds_read_b64_tr_b16 {vr(d,2)}, v{WA+2*t+u} offset:{(s_%NW)*8192+sp2*4096}", [d, d+1], [WA+2*t+u], tag=tag)
            def mm(buf, ks=ks, t=t, c=c, sp=sp):
                a.mfma('32', OA+16*t, FB+4*buf, XF+16*(c % 2)+4*sp, None if ks == 0 else OA+16*t)
            jobs.append((rd, mm))
    def hook(j):
        if j % 8 == 0:
            s_ = j // 8
            a.wait_vm(('W', s_))
            a.barrier()
            if s_ >= 2 and s_ + NW - 2 < 20: issue_W(s_ + NW - 2)
            if s_ == 17: issue_KV(1)
            if s_ == 19:
                issue_KV(2)
                if AHEAD >= 3: issue_KV(3)
            if s_ in (0, 10): st(40 + s_ // 10)
        if j % 16 == 4 and j >= 16:
            c = j // 16
            if c + 2 < 10: issue_X(c + 2)
        if j == 4: issue_X(2)
        if j % 16 == 11:
            c = j // 16
            if c + 1 < 10: read_X(c + 1)
    a.wait_lg(('xf', 0))
    merge(a, jobs, [], 4, NB, hook=hook)
    for s_ in range(8):
        t = s_ >> 1
        for ii in range(4):
            r = OA + 16*t + 8*(s_ & 1) + 2*ii
            a.valu(f"v_cvt_pk_bf16_f32 v{QF+4*s_+ii}, v{r}, v{r+1}", [QF+4*s_+ii], [r, r+1])
    st.vt = 14
    a.salu(f"s_mov_b32 s30, 0x{f32bits(CSCALE):08x}")
    a.salu("s_lshl_b32 s29, s38, 20")
    srd_from(a, 4, "s72", "s73", "s29", 1 << 20, OWS_OFF)
    a.valu("v_lshrrev_b32 v10, 1, v8", [10], [8])
    a.valu("v_lshl_or_b32 v10, v9, 1, v10", [10], [9, 10])
    a.valu("v_and_b32 v11, 1, v8", [11], [8])
    for u in range(2):
        a.valu(f"v_or_b32 v12, {2*u}, v5", [12], [5])
        a.valu("v_xor_b32 v13, v10, v12", [13], [10, 12])
        a.valu("v_lshlrev_b32 v13, 4, v13", [13], [13])
        a.valu("v_lshl_add_u32 v13, v11, 3, v13", [13], [11, 13])
        a.valu("v_lshl_add_u32 v14, v12, 2, v7", [14], [12, 7])
        a.valu("v_lshl_add_u32 v13, v14, 8, v13", [13], [14, 13])
        a.valu("v_lshl_add_u32 v13, v7, 6, v13", [13], [7, 13])
        for t in range(4):
            a.valu(f"v_xor_b32 v{VA+2*t+u}, {t*64}, v13", [VA+2*t+u], [13])
    st(1)

    base = {'K': 0, 'V': 0}
    def rebase(which, slot):
        regs = range(KA, KA+8) if which == 'K' else range(VA, VA+8)
        need = base[which]
        if slot == 4: need = SLOT
        if slot == 0: need = 0
        if need != base[which]:
            for r in regs:
                if need > base[which]:
                    a.valu(f"v_add_u32 v{r}, {need-base[which]}, v{r}", [r], [r])
                else:
                    a.valu(f"v_subrev_u32 v{r}, {base[which]-need}, v{r}", [r], [r])
            base[which] = need
        return slot * SLOT - base[which]
    def V(text, dst, src, **kw):
        return lambda: a.valu(text, dst, src, **kw)
    def part1(j):
        SS = SB[j % 2]; T = j
        o = []
        for c_, tr in ((0, T0), (16, T1)):
            o.append(V(f"v_max3_f32 v{tr}, v{SS+c_}, v{SS+c_+1}, v{SS+c_+2}", [tr], [SS+c_, SS+c_+1, SS+c_+2]))
        for k in range(3, 15, 2):
            for c_, tr in ((0, T0), (16, T1)):
                o.append(V(f"v_max3_f32 v{tr}, v{tr}, v{SS+c_+k}, v{SS+c_+k+1}", [tr], [tr, SS+c_+k, SS+c_+k+1]))
        o.append(V(f"v_max3_f32 v{T0}, v{T0}, v{T1}, v{SS+15}", [T0], [T0, T1, SS+15]))
        o.append(V(f"v_max_f32 v{T0}, v{T0}, v{SS+31}", [T0], [T0, SS+31]))
        o.append(V(f"v_mov_b32 v{T1}, v{T0}", [T1], [T0]))
        o.append(V(f"v_permlane32_swap_b32 v{T0}, v{T1}", [T0, T1], [T0, T1], kind='permlane'))
        if T == 0:
            o.append(V(f"v_max_f32 v{M}, v{T0}, v{T1}", [M], [T0, T1]))
        else:
            o.append(V(f"v_max3_f32 v{T2}, v{T0}, v{T1}, v{M}", [T2], [T0, T1, M]))
            o.append(V(f"v_sub_f32 v{T3}, v{M}, v{T2}", [T3], [M, T2]))
            o.append(V(f"v_mul_f32 v{T3}, s30, v{T3}", [T3], [T3]))
            o.append(V(f"v_exp_f32 v{AL}, v{T3}", [AL], [T3], trans=True))
            o.append(V(f"v_mov_b32 v{M}, v{T2}", [M], [T2]))
        o.append(V(f"v_mul_f32 v{MC}, s30, v{M}", [MC], [M]))
        for i in range(32):
            o.append(V(f"v_fma_f32 v{SS+i}, v{SS+i}, s30, -v{MC}", [SS+i], [SS+i, MC]))
        return o
    def part2(j):
        SS = SB[j % 2]; T = j
        o = []; resc = []
        if T > 0:
            for i in range(0, 64, 2):
                resc.append(V(f"v_pk_mul_f32 {vr(OA+i,2)}, {vr(OA+i,2)}, {vr(AL,2)} op_sel_hi:[1,0]", [OA+i, OA+i+1], [OA+i, OA+i+1, AL]))
        for i in range(32):
            o.append(V(f"v_exp_f32 v{SS+i}, v{SS+i}", [SS+i], [SS+i], trans=True))
            if resc: o.append(resc.pop(0))
        for c_, tr in ((0, T0), (8, T1), (16, T2), (24, T3)):
            o.append(V(f"v_add_f32 v{tr}, v{SS+c_}, v{SS+c_+1}", [tr], [SS+c_, SS+c_+1]))
        for k in range(2, 8):
            for c_, tr in ((0, T0), (8, T1), (16, T2), (24, T3)):
                o.append(V(f"v_add_f32 v{tr}, v{tr}, v{SS+c_+k}", [tr], [tr, SS+c_+k]))
        o.append(V(f"v_add_f32 v{T0}, v{T0}, v{T1}", [T0], [T0, T1]))
        o.append(V(f"v_add_f32 v{T2}, v{T2}, v{T3}", [T2], [T2, T3]))
        if T == 0:
            o.append(V(f"v_add_f32 v{L}, v{T0}, v{T2}", [L], [T0, T2]))
        else:
            o.append(V(f"v_add_f32 v{T0}, v{T0}, v{T2}", [T0], [T0, T2]))
            o.append(V(f"v_fma_f32 v{L}, v{L}, v{AL}, v{T0}", [L], [L, AL, T0]))
        for i in range(16):
            o.append(V(f"v_cvt_pk_bf16_f32 v{SS+i}, v{SS+2*i}, v{SS+2*i+1}", [SS+i], [SS+2*i, SS+2*i+1]))
        return o

    for p in range(NP):
        kind, j = seq[p]
        slot = PERM[p % 5]
        off = rebase(kind, slot)
        a.wait_vm(('KV', p))
        a.barrier()
        if p == 0 and AHEAD >= 4: issue_KV(4)
        if p >= 1 and p + AHEAD < NP: issue_KV(p + AHEAD)
        st(3 + p)
        jobs = []
        if kind == 'K':
            SS = SB[j % 2]
            for kt in range(2):
                for s_ in range(8):
                    def rd(buf, tag, kt=kt, s_=s_):
                        d = FB + 4*buf
                        a.ds_read(f"ds_read_b128 {vr(d,4)}, v{KA+s_} offset:{off+kt*8192}", range(d, d+4), [KA+s_], tag=tag)
                    def mm(buf, kt=kt, s_=s_, SS=SS):
                        a.mfma('32', SS+16*kt, FB+4*buf, QF+4*s_, None if s_ == 0 else SS+16*kt)
                    jobs.append((rd, mm))
            merge(a, jobs, part2(j - 1) if j > 0 else [], 5, NB, lead=8)
            if j == 0:
                for f in part1(0): f()
        else:
            if j == 7:
                for f in part2(7): f()
            PP = SB[j % 2]
            for jq in range(4):
                for t in range(4):
                    def rd(buf, tag, jq=jq, t=t):
                        for u in range(2):
                            d = FB + 4*buf + 2*u
                            a.ds_read(f"ds_read_b64_tr_b16 {vr(d,2)}, v{VA+2*t+u} offset:{off+jq*4096}", [d, d+1], [VA+2*t+u], tag=tag)
                    def mm(buf, jq=jq, t=t, j=j, PP=PP):
                        first = (j == 0 and jq == 0)
                        a.mfma('32', OA+16*t, FB+4*buf, PP+4*jq, None if first else OA+16*t)
                    jobs.append((rd, mm))
            merge(a, jobs, part1(j + 1) if j < 7 else [], 4, NB, lead=6)
    TMPO = SB[1]
    a.valu(f"v_mov_b32 v{T0}, v{L}", [T0], [L])
    a.valu(f"v_mov_b32 v{T1}, v{L}", [T1], [L])
    a.valu(f"v_permlane32_swap_b32 v{T0}, v{T1}", [T0, T1], [T0, T1], kind='permlane')
    a.valu(f"v_add_f32 v{T0}, v{T0}, v{T1}", [T0], [T0, T1])
    a.valu(f"v_rcp_f32 v{AL}, v{T0}", [AL], [T0], trans=True)
    a.salu("s_lshl_b32 s29, s37, 12")
    for t in range(4):
        for i in range(0, 16, 2):
            r = OA + 16*t + i
            a.valu(f"v_pk_mul_f32 {vr(r,2)}, {vr(r,2)}, {vr(AL,2)} op_sel_hi:[1,0]", [r, r+1], [r, r+1, AL])
        for piece in range(2):
            d = TMPO + 8*t + 4*piece
            for k, rr in enumerate((4*piece, 4*piece+2, 8+4*piece, 8+4*piece+2)):
                r = OA + 16*t + rr
                a.valu(f"v_cvt_pk_bf16_f32 v{d+k}, v{r}, v{r+1}", [d+k], [r, r+1])
            a.vmem_store(f"buffer_store_dwordx4 {vr(d,4)}, v{VO}, s[4:7], s29 offen offset:{t*1024+piece*512} {OST}", [VO], range(d, d+4), tag='O')
    st(35)
    a.salu("s_cmp_ge_u32 s2, 256")
    a.salu("s_cbranch_scc1 attn_done")
    RING = 48; TA, VL16, VL16B = 16, 17, 18
    a.salu("s_lshl_b32 s77, s34, 5"); a.salu("s_add_u32 s77, s77, s32")
    a.salu("s_mul_i32 s29, s77, 40960")
    srd_from(a, 12, "s74", "s75", "s29", 40960)
    a.salu("s_mul_i32 s29, s33, 5242880")
    srd_from(a, 96, "s72", "s73", "s29", 5242880, WOP_OFF)
    a.valu(f"v_lshlrev_b32 v{VL16}, 4, v1", [VL16], [1])
    a.valu(f"v_add_u32 v{VL16B}, 0x1000, v{VL16}", [VL16B], [VL16])
    a.valu("v_lshl_add_u32 v10, v3, 2, v7", [10], [3, 7])
    a.valu("v_mul_u32_u24 v10, 0x500, v10", [10], [10])
    a.valu("v_lshl_add_u32 v10, v8, 3, v10", [10], [8, 10])
    a.salu("s_mul_i32 s27, s24, 320")
    a.valu(f"v_add_u32 v{TA}, s27, v10", [TA], [10])
    a.salu("s_mul_i32 s27, s24, 10240")
    a.barrier()
    for grp in range(3):
        a.salu(f"s_add_u32 m0, s27, {grp*4096}", m0=True)
        a.salu(f"s_add_u32 s29, s27, {grp*4096}")
        for jj in range(4 if grp < 2 else 2):
            a.vmem_dma(f"buffer_load_dwordx4 v{VL16}, s[12:15], s29 offen offset:{jj*1024} nt lds", [VL16], tag='pk')
    a.wait_vm('pk')
    a.barrier()
    for half in range(2):
        for nt_ in range(5):
            for u in range(2):
                d = RING + 20*half + 4*nt_ + 2*u
                a.ds_read(f"ds_read_b64_tr_b16 {vr(d,2)}, v{TA} offset:{u*20480+(half*5+nt_)*32}", [d, d+1], [TA], tag=('pr', half))
        a.wait_lg_all()
        a.salu(f"s_lshl_b32 s29, s24, 1"); a.salu(f"s_add_u32 s29, s29, {half}"); a.salu("s_lshl_b32 s29, s29, 7")
        a.salu("s_add_u32 s29, s29, s77"); a.salu("s_mul_i32 s29, s29, 5120")
        for nt_ in range(5):
            d = RING + 20*half + 4*nt_
            if nt_ < 4:
                a.vmem_store(f"buffer_store_dwordx4 {vr(d,4)}, v{VL16}, s[96:99], s29 offen offset:{nt_*1024} {OST}", [VL16], range(d, d+4), tag='pks')
            else:
                a.vmem_store(f"buffer_store_dwordx4 {vr(d,4)}, v{VL16B}, s[96:99], s29 offen {OST}", [VL16B], range(d, d+4), tag='pks')
    a.label("attn_done")
    a.salu("s_endpgm")

def gen_oproj(a):
    ACC, RING = 16, 96
    VL16, VL16B, VOF, VST = 246, 247, 248, 252
    D = 4; NK = 16
    a.label("oproj_kernel")
    a.salu("s_cmp_ge_u32 s2, 256")
    a.salu("s_cbranch_scc1 oproj_done")
    kernargs(a)
    a.salu("s_and_b32 s31, s2, 7")
    a.salu("s_lshr_b32 s32, s2, 3")
    a.salu("s_lshr_b32 s33, s31, 2")
    a.salu("s_bfe_u32 s34, s31, 0x10001")
    a.salu("s_and_b32 s35, s31, 1")
    a.salu("s_and_b32 s36, s32, 7")
    a.salu("s_lshl_b32 s34, s34, 3")
    a.salu("s_add_u32 s34, s34, s36")
    a.salu("s_lshr_b32 s36, s32, 3")
    a.salu("s_lshl_b32 s35, s35, 2")
    a.salu("s_add_u32 s35, s35, s36")
    a.salu("s_lshl_b32 s38, s33, 3"); a.salu("s_add_u32 s38, s38, s35")
    lane_consts(a)
    a.valu(f"v_lshlrev_b32 v{VL16}, 4, v1", [VL16], [1])
    a.valu(f"v_add_u32 v{VL16B}, 0x1000, v{VL16}", [VL16B], [VL16])
    for qt in range(4):
        a.valu(f"v_add_u32 v{VOF+qt}, {qt*131072}, v{VL16}", [VOF+qt], [VL16])
    a.salu("s_waitcnt lgkmcnt(0)")
    a.salu("s_mul_i32 s29, s38, 655360")
    srd_from(a, 12, "s72", "s73", "s29", 655360, WOP_OFF)
    a.salu("s_lshl_b32 s29, s33, 4"); a.salu("s_add_u32 s29, s29, s34"); a.salu("s_lshl_b32 s29, s29, 19")
    srd_from(a, 16, "s72", "s73", "s29", 524288, OWS_OFF)
    a.salu("s_lshl_b32 s26, s24, 4")
    a.salu("s_mul_i32 s27, s26, 5120")
    a.salu("s_lshl_b32 s28, s26, 10")
    def issue(k):
        slot = k % D
        a.salu(f"s_add_u32 s29, s27, {k*5120}")
        a.salu(f"s_add_u32 s30, s28, {k*1024}")
        for nt_ in range(5):
            d = RING + 36*slot + 4*nt_
            if nt_ < 4:
                a.vmem_load(f"buffer_load_dwordx4 {vr(d,4)}, v{VL16}, s[12:15], s29 offen offset:{nt_*1024}", range(d, d+4), [VL16], tag=('k', k))
            else:
                a.vmem_load(f"buffer_load_dwordx4 {vr(d,4)}, v{VL16B}, s[12:15], s29 offen", range(d, d+4), [VL16B], tag=('k', k))
        for qt in range(4):
            d = RING + 36*slot + 20 + 4*qt
            a.vmem_load(f"buffer_load_dwordx4 {vr(d,4)}, v{VOF+qt}, s[16:19], s30 offen", range(d, d+4), [VOF+qt], tag=('k', k))
    for k in range(D): issue(k)
    a.salu("s_mul_i32 s29, s34, 163840")
    a.salu("s_mul_i32 s30, s33, 1280"); a.salu("s_add_u32 s29, s29, s30")
    a.salu("s_mul_i32 s30, s35, 160"); a.salu("s_add_u32 s29, s29, s30")
    a.salu("s_sub_u32 s30, 2621440, s29")
    srd_from(a, 20, "s68", "s69", "s29", "s30")
    st = Stamper(a, 14, 15, wshift=3)
    st.setup()
    st(0)
    for k in range(NK):
        slot = k % D
        a.wait_vm(('k', k))
        for nt_ in range(5):
            for qt in range(4):
                d = ACC + 4*(nt_*4 + qt)
                a.mfma('16', d, RING + 36*slot + 4*nt_, RING + 36*slot + 20 + 4*qt, None if k == 0 else d)
        if k + D < NK: issue(k + D)
        if k in (0, 7): st(1 + k // 7)
    st(3)
    a.salu("s_mul_i32 s27, s24, 20480")
    a.valu(f"v_add_u32 v11, s27, v{VL16}", [11], [VL16])
    for tile in range(20):
        d = ACC + 4*tile
        a.ds_write(f"ds_write_b128 v11, {vr(d,4)} offset:{tile*1024}", [11] + list(range(d, d+4)))
        if len(a.lgq) >= 12: a.wait_lg_all()
    a.wait_lg_all()
    a.barrier()
    a.salu("s_lshl_b32 s29, s24, 10")
    for g in range(3):
        a.valu(f"v_add_u32 v{10+g}, s29, v{VL16}", [10+g], [VL16])
        if g: a.valu(f"v_add_u32 v{10+g}, {g*61440}, v{10+g}", [10+g], [10+g])
    a.valu("v_and_b32 v13, 3, v2", [13], [2])
    a.valu("v_lshl_add_u32 v13, v13, 4, v4", [13], [13, 4])
    a.valu("v_mul_u32_u24 v13, 0xa00, v13", [13], [13])
    a.valu("v_lshl_add_u32 v13, v3, 3, v13", [13], [3, 13])
    a.valu("v_lshrrev_b32 v14, 2, v2", [14], [2])
    a.valu(f"v_lshl_add_u32 v{VST}, v14, 5, v13", [VST], [14, 13])
    lskip = a.newlabel("RS")
    for i in range(3):
        if i == 2:
            a.salu("s_cmp_ge_u32 s24, 4")
            a.salu(f"s_cbranch_scc1 {lskip}")
        for src in range(8):
            d = RING + 32*i + 4*src
            ar = 10 + src // 3
            a.ds_read(f"ds_read_b128 {vr(d,4)}, v{ar} offset:{(src%3)*20480 + i*8192}", range(d, d+4), [ar], tag=('R', i))
        a.wait_lg_all()
        d = RING + 32*i
        for step in (4, 2, 1):
            for q in range(step):
                for k in range(4):
                    x, y = d + 4*q + k, d + 4*(q+step) + k
                    a.valu(f"v_add_f32 v{x}, v{x}, v{y}", [x], [x, y])
        a.valu(f"v_cvt_pk_bf16_f32 v{d+4}, v{d}, v{d+1}", [d+4], [d, d+1])
        a.valu(f"v_cvt_pk_bf16_f32 v{d+5}, v{d+2}, v{d+3}", [d+5], [d+2, d+3])
        a.vmem_store(f"buffer_store_dwordx2 {vr(d+4,2)}, v{VST}, s[20:23], 0 offen offset:{i*64}", [VST], [d+4, d+5], tag='st')
    a.label(lskip)
    st(4)
    a.label("oproj_done")
    a.salu("s_endpgm")

def kd(name, vgpr):
    return f""".p2align 6
.amdhsa_kernel {name}
  .amdhsa_next_free_vgpr {vgpr}
  .amdhsa_next_free_sgpr 102
  .amdhsa_accum_offset {vgpr}
  .amdhsa_group_segment_fixed_size 0
  .amdhsa_kernarg_size 104
  .amdhsa_user_sgpr_count 2
  .amdhsa_user_sgpr_kernarg_segment_ptr 1
  .amdhsa_system_sgpr_workgroup_id_x 1
.end_amdhsa_kernel
"""

def main(out):
    hdr = """; Generated by gen/gen_v6.py (hand-written generator).
; @launch kernel=attn_kernel grid=(512,1,1) block=(256,1,1) lds=81920
; @launch kernel=oproj_kernel grid=(256,1,1) block=(512,1,1) lds=163840
.amdgcn_target "amdgcn-amd-amdhsa--gfx950"
.text
"""
    body = ""
    for name, g in (("attn_kernel", gen_attn), ("oproj_kernel", gen_oproj)):
        a = Asm()
        g(a)
        body += f".globl {name}\n.p2align 8\n.type {name},@function\n" + a.text()
    tail = '.section .rodata,"a"\n' + kd("attn_kernel", 232) + kd("oproj_kernel", 256)
    open(out, "w").write(hdr + body + tail)

if __name__ == "__main__":
    main(sys.argv[1] if len(sys.argv) > 1 else f"cdna_kernels/{NAME}.s")
```

```python
import sys, struct, os, math
sys.path.insert(0, 'gen')
from asmlib import *

NAME = "concat_heads__gqa_block_cached__mha_block_cached__near_ridge"
CSCALE = (128 ** -0.5) * math.log2(math.e)
def f32bits(x): return struct.unpack('<I', struct.pack('<f', x))[0]
E = lambda k, d: int(os.environ.get(k, str(d)))
STAMP = E("STAMP", 0); TOUCH = E("TOUCH", 1); AHEAD = E("AHEAD", 4); PRIO = E("PRIO", 1)
WNT = " nt" if E("WNT", 1) else ""
PACKAT = 0 if E("NOPACK", 0) else E("PACKAT", 2)
XNT = " nt" if E("XNT", 1) else ""
QONLY = E("QONLY", 0); NOPACK = E("NOPACK", 0); NOK0 = E("NOK0", 0); NOMMA = E("NOMMA", 0); NODMA = E("NODMA", 0); NOX = E("NOX", 0); NOW = E("NOW", 0)
OST = "sc1"
OWS_OFF, WOP_OFF, FLG_OFF, STAMP_OFF = 0, 32 << 20, 48 << 20, 64 << 20
FO_OFF, FW_OFF = 65536, 131072
SPIN_LIMIT = 1 << 21
KNAME = NAME + "_kernel"

def spin(a, vp, voff, srd, soff, cmp_with, want_equal=True, sleep=2):
    l, ld = a.newlabel("SP"), a.newlabel("SD")
    a.salu("s_mov_b32 s95, 0")
    a.nop(4)
    a.label(l)
    a.raw(f"    buffer_load_dword v{vp}, v{voff}, {srd}, {soff} offen sc1")
    a.raw("    s_waitcnt vmcnt(0)")
    a.raw(f"    v_cmp_{'ne' if want_equal else 'eq'}_u32 vcc, {cmp_with}, v{vp}")
    a.raw(f"    s_cbranch_vccz {ld}")
    a.raw("    s_add_u32 s95, s95, 1")
    a.raw(f"    s_cmp_gt_u32 s95, {SPIN_LIMIT}")
    a.raw(f"    s_cbranch_scc1 {ld}")
    a.raw(f"    s_sleep {sleep}")
    a.raw(f"    s_branch {l}")
    a.label(ld)
    a.vmq.clear()
    a.nop(4)


def srd_from(a, d, base_lo, base_hi, off_sreg, size, const_off=0):
    a.salu(f"s_add_u32 s{d}, {base_lo}, {off_sreg}")
    a.salu(f"s_addc_u32 s{d+1}, {base_hi}, 0")
    if const_off:
        a.salu(f"s_add_u32 s{d}, s{d}, {const_off}")
        a.salu(f"s_addc_u32 s{d+1}, s{d+1}, 0")
    a.salu(f"s_and_b32 s{d+1}, s{d+1}, 0xffff")
    a.salu(f"s_mov_b32 s{d+2}, {size}")
    a.salu(f"s_mov_b32 s{d+3}, 0x00020000")

class Stamper:
    def __init__(self, a, vtmp, vzero, wshift=2):
        self.a, self.vt, self.vz, self.ws = a, vtmp, vzero, wshift
    def setup(self):
        a = self.a
        if not STAMP: return
        a.salu("s_mov_b32 s78, 0")
        srd_from(a, 80, "s72", "s73", "s78", 1 << 20, STAMP_OFF)
        a.salu(f"s_lshl_b32 s78, s2, {self.ws}"); a.salu("s_add_u32 s78, s78, s24"); a.salu("s_lshl_b32 s78, s78, 8")
    def __call__(self, idx):
        a = self.a
        if not STAMP: return
        a.wait_lg_all()
        a.salu("s_memrealtime s[90:91]")
        a.salu("s_waitcnt lgkmcnt(0)")
        a.valu(f"v_mov_b32 v{self.vt}, s90", [self.vt], [])
        a.vmem_store(f"buffer_store_dword v{self.vt}, v{self.vz}, s[80:83], s78 offen offset:{idx*4}", [self.vz], [self.vt], tag='stamp')

def merge(a, jobs, valus, PD, NB, lead=0, hook=None):
    n = len(jobs); vi = 0
    for i in range(-PD, n):
        if i + PD < n:
            if hook: hook(i + PD)
            jobs[i + PD][0]((i + PD) % NB, ('job', i + PD))
        if i == -1:
            for _ in range(min(lead, len(valus) - vi)):
                valus[vi](); vi += 1
        if i >= 0:
            a.wait_lg(('job', i))
            jobs[i][1](i % NB)
            rem = len(valus) - vi
            k = -(-rem // (n - i))
            for _ in range(k):
                valus[vi](); vi += 1
    while vi < len(valus):
        valus[vi](); vi += 1

def kernargs(a):
    a.salu("s_load_dwordx16 s[48:63], s[0:1], 0")
    a.salu("s_load_dwordx8 s[64:71], s[0:1], 64")
    a.salu("s_load_dwordx2 s[72:73], s[0:1], 96")

def lane_consts(a):
    a.valu("v_and_b32 v1, 63, v0", [1], [0])
    a.valu("v_lshrrev_b32 v2, 6, v0", [2], [0])
    a.valu("v_readfirstlane_b32 s24, v2", [], [2], sdst=['s24'], kind='readlane')
    a.valu("v_lshrrev_b32 v3, 4, v1", [3], [1])
    a.valu("v_and_b32 v4, 15, v1", [4], [1])
    a.valu("v_lshrrev_b32 v5, 5, v1", [5], [1])
    a.valu("v_and_b32 v6, 31, v1", [6], [1])
    a.valu("v_bfe_u32 v7, v1, 2, 2", [7], [1])
    a.valu("v_and_b32 v8, 3, v1", [8], [1])
    a.valu("v_and_b32 v9, 1, v3", [9], [3])
    a.valu("v_mov_b32 v15, 0", [15], [])

def gen_attn(a):
    QF = 16
    OA, SB, FB = 48, [112, 144], 176
    KA, VA, VKV = 200, 208, 216
    M, L, AL, MC, T0, T1, T2, T3 = 220, 221, 222, 224, 225, 226, 227, 228
    VO = 229
    NB = 6
    SLOT = 16384
    NW = E("NW", 4)
    XB = NW * 8192
    a.label(KNAME)
    a.salu("s_cmp_ge_u32 s2, 512")
    a.salu("s_cbranch_scc1 attn_done")
    kernargs(a)
    a.salu("s_and_b32 s31, s2, 7")
    a.salu("s_lshr_b32 s32, s2, 3")
    a.salu("s_lshr_b32 s33, s31, 2")
    a.salu("s_and_b32 s34, s31, 3")
    a.salu("s_and_b32 s35, s32, 7")
    a.salu("s_lshr_b32 s36, s32, 3")
    if E("HSPREAD", 1):
        a.salu("s_lshl_b32 s37, s36, 2")
        a.salu("s_add_u32 s37, s37, s34")
    else:
        a.salu("s_lshl_b32 s37, s34, 3")
        a.salu("s_add_u32 s37, s37, s36")
    a.salu("s_lshl_b32 s38, s33, 3")
    a.salu("s_add_u32 s38, s38, s35")
    lane_consts(a)
    if PRIO:
        lp = a.newlabel("PR")
        a.salu("s_cmp_ge_u32 s2, 256")
        a.salu(f"s_cbranch_scc1 {lp}")
        a.salu("s_setprio 2")
        a.label(lp)
    for jj in range(4):
        a.valu(f"v_lshl_or_b32 v10, v3, 2, {jj}", [10], [3])
        a.valu("v_xor_b32 v10, v4, v10", [10], [4, 10])
        a.valu("v_lshlrev_b32 v10, 4, v10", [10], [10])
        a.valu(f"v_lshl_add_u32 v{VKV+jj}, v3, 8, v10", [VKV+jj], [3, 10])
    XF, WA, VW, VX, XA, TMP = SB[0], VA, SB[1], SB[1]+2, SB[1]+6, SB[1]+10
    for jj in range(2):
        a.valu(f"v_lshl_or_b32 v10, v2, 1, {jj}", [10], [2])
        a.valu("v_and_b32 v10, 3, v10", [10], [10])
        a.valu("v_lshl_or_b32 v10, v3, 2, v10", [10], [3, 10])
        a.valu("v_xor_b32 v10, v4, v10", [10], [4, 10])
        a.valu("v_lshlrev_b32 v10, 4, v10", [10], [10])
        a.valu("v_lshl_add_u32 v10, v3, 13, v10", [10], [3, 10])
        a.valu(f"v_add_u32 v{VW+jj}, {jj*(4*8192-1024)}, v10", [VW+jj], [10])
    a.valu("v_lshrrev_b32 v11, 3, v1", [11], [1])
    a.valu("v_mul_u32_u24 v11, 0x500, v11", [11], [11])
    a.valu("v_and_b32 v12, 7, v1", [12], [1])
    for jj in range(4):
        a.valu(f"v_add_u32 v10, {(4*jj) & 7}, v3", [10], [3])
        a.valu("v_xor_b32 v10, v12, v10", [10], [12, 10])
        a.valu("v_lshl_add_u32 v10, v10, 4, v11", [10], [10, 11])
        a.valu(f"v_add_u32 v{VX+jj}, {jj*(8*1280-1024)}, v10", [VX+jj], [10])
    a.salu("s_waitcnt lgkmcnt(0)")
    a.salu("s_cmp_eq_u32 s33, 1")
    a.salu("s_cselect_b64 s[40:41], s[58:59], s[48:49]")
    a.salu("s_cselect_b64 s[42:43], s[60:61], s[50:51]")
    a.salu("s_cselect_b64 s[44:45], s[62:63], s[52:53]")
    a.salu("s_cselect_b64 s[46:47], s[64:65], s[54:55]")
    a.salu("s_cselect_b64 s[74:75], s[66:67], s[56:57]")
    a.salu("s_mul_i32 s29, s35, 163840")
    srd_from(a, 4, "s40", "s41", "s29", 163840)
    a.salu("s_lshl_b32 s93, s37, 8")
    a.salu("s_sub_u32 s30, 5242880, s93")
    srd_from(a, 12, "s46", "s47", "s93", "s30")
    a.salu("s_lshl_b32 s29, s35, 5"); a.salu("s_add_u32 s29, s29, s37"); a.salu("s_lshl_b32 s29, s29, 17")
    srd_from(a, 20, "s42", "s43", "s29", 131072)
    srd_from(a, 96, "s44", "s45", "s29", 131072)
    a.salu("s_lshl_b32 s26, s24, 11")
    a.salu("s_lshl_b32 s27, s24, 16")
    a.salu("s_lshl_b32 s92, s24, 12")
    a.salu(f"s_add_u32 s28, s92, {XB}")
    a.salu("s_mul_i32 s25, s24, 40960")
    st = Stamper(a, QF + 31, 15)
    st.setup()
    st(0)
    a.salu("s_mov_b32 s16, s70"); a.salu("s_and_b32 s17, s71, 0xffff"); a.salu("s_mov_b32 s18, 256"); a.salu("s_mov_b32 s19, 0x00020000")
    l0 = a.newlabel("NN")
    a.salu("s_or_b32 s29, s2, s24")
    a.salu("s_cmp_lg_u32 s29, 0")
    a.salu(f"s_cbranch_scc1 {l0}")
    a.salu("s_memrealtime s[90:91]")
    a.salu("s_waitcnt lgkmcnt(0)")
    a.salu("s_or_b32 s90, s90, 1")
    a.valu("v_mov_b32 v14, s90", [14], [])
    a.raw("    buffer_store_dword v14, v15, s[16:19], 0 offen sc1")
    a.raw("    s_waitcnt vmcnt(0)")
    a.label(l0)
    a.nop(3)

    seq = [('K', 0)]
    for i in range(7): seq += [('K', i + 1), ('V', i)]
    seq += [('V', 7)]
    NP = len(seq)
    PERM = [4, 2, 0, 3, 1]
    def issue_KV(p):
        if NODMA: return
        kind, j = seq[p]
        slot = PERM[p % 5]
        srd = "s[20:23]" if kind == 'K' else "s[96:99]"
        a.salu(f"s_add_u32 m0, s92, {slot*SLOT}", m0=True)
        a.salu(f"s_add_u32 s29, s92, {j*16384}")
        for jj in range(4):
            a.vmem_dma(f"buffer_load_dwordx4 v{VKV+jj}, {srd}, s29 offen offset:{jj*1024} nt lds", [VKV+jj], tag=('KV', p))
    def issue_W(s_):
        if NODMA or NOW: return
        buf = s_ % NW
        a.salu(f"s_add_u32 m0, s26, {buf*8192}", m0=True)
        a.salu(f"s_add_u32 s29, s27, {s_*32*8192}")
        for jj in range(2):
            a.vmem_dma(f"buffer_load_dwordx4 v{VW+jj}, s[12:15], s29 offen offset:{jj*1024}{WNT} lds", [VW+jj], tag=('W', s_))
    def issue_X(c):
        if NODMA or NOX: return
        a.salu(f"s_add_u32 m0, s28, {(c%2)*16384}", m0=True)
        a.salu(f"s_add_u32 s29, s25, {c*128}")
        for jj in range(4):
            a.vmem_dma(f"buffer_load_dwordx4 v{VX+jj}, s[4:7], s29 offen offset:{jj*1024}{XNT} lds", [VX+jj], tag=('X', c))
    def read_X(c):
        a.wait_vm(('X', c))
        if NOMMA: return
        for sp in range(4):
            d = XF + 16*(c % 2) + 4*sp
            a.ds_read(f"ds_read_b128 {vr(d,4)}, v{XA+sp} offset:{(c%2)*16384}", range(d, d+4), [XA+sp], tag=('xf', c))

    BD = E("BDELAY", 0)
    if BD:
        ld, l2 = a.newlabel("BD"), a.newlabel("BE")
        a.salu("s_cmp_lt_u32 s2, 256")
        a.salu(f"s_cbranch_scc1 {l2}")
        a.salu("s_memrealtime s[88:89]"); a.salu("s_waitcnt lgkmcnt(0)")
        a.salu(f"s_add_u32 s88, s88, {BD}")
        a.label(ld)
        a.salu("s_sleep 4")
        a.salu("s_memrealtime s[90:91]"); a.salu("s_waitcnt lgkmcnt(0)")
        a.salu("s_sub_u32 s90, s90, s88")
        a.salu("s_cmp_lt_i32 s90, 0")
        a.salu(f"s_cbranch_scc1 {ld}")
        a.label(l2)
    def do_pack(at_end):
        lpk = a.newlabel("PK")
        a.salu("s_cmp_lt_u32 s2, 256" if not at_end else "s_cmp_ge_u32 s2, 256")
        a.salu(f"s_cbranch_scc1 {lpk}")
        RING = 48; TA, VL16, VL16B = 16, 17, 18
        a.salu("s_lshl_b32 s77, s34, 5"); a.salu("s_add_u32 s77, s77, s32")
        if not at_end: a.salu("s_sub_u32 s77, s77, 32")
        if at_end: a.barrier()
        a.salu("s_mul_i32 s29, s77, 40960")
        srd_from(a, 84, "s74", "s75", "s29", 40960)
        a.salu("s_mul_i32 s29, s33, 5242880")
        srd_from(a, 8, "s72", "s73", "s29", 5242880, WOP_OFF)
        a.valu(f"v_lshlrev_b32 v{VL16}, 4, v1", [VL16], [1])
        a.valu(f"v_add_u32 v{VL16B}, 0x1000, v{VL16}", [VL16B], [VL16])
        a.valu("v_lshl_add_u32 v10, v3, 2, v7", [10], [3, 7])
        a.valu("v_mul_u32_u24 v10, 0x500, v10", [10], [10])
        a.valu("v_lshl_add_u32 v10, v8, 3, v10", [10], [8, 10])
        a.salu("s_mul_i32 s76, s24, 320")
        a.valu(f"v_add_u32 v{TA}, s76, v10", [TA], [10])
        a.salu("s_mul_i32 s76, s24, 10240")
        for grp in range(3):
            a.salu(f"s_add_u32 m0, s76, {grp*4096}", m0=True)
            a.salu(f"s_add_u32 s29, s76, {grp*4096}")
            for jj in range(4 if grp < 2 else 2):
                a.vmem_dma(f"buffer_load_dwordx4 v{VL16}, s[84:87], s29 offen offset:{jj*1024} nt lds", [VL16], tag='pk')
        a.wait_vm('pk')
        a.barrier()
        for half in range(2):
            for nt_ in range(5):
                for u in range(2):
                    d = RING + 20*half + 4*nt_ + 2*u
                    a.ds_read(f"ds_read_b64_tr_b16 {vr(d,2)}, v{TA} offset:{u*20480+(half*5+nt_)*32}", [d, d+1], [TA], tag=('pr', half))
            a.wait_lg_all()
            a.salu(f"s_lshl_b32 s29, s24, 1"); a.salu(f"s_add_u32 s29, s29, {half}"); a.salu("s_lshl_b32 s29, s29, 7")
            a.salu("s_add_u32 s29, s29, s77"); a.salu("s_mul_i32 s29, s29, 5120")
            for nt_ in range(5):
                d = RING + 20*half + 4*nt_
                if nt_ < 4:
                    a.vmem_store(f"buffer_store_dwordx4 {vr(d,4)}, v{VL16}, s[8:11], s29 offen offset:{nt_*1024} {OST}", [VL16], range(d, d+4), tag='pks')
                else:
                    a.vmem_store(f"buffer_store_dwordx4 {vr(d,4)}, v{VL16B}, s[8:11], s29 offen {OST}", [VL16B], range(d, d+4), tag='pks')
        if not at_end:
            a.barrier()
            a.wait_vm_all()
        a.label(lpk)
        a.vmq.clear()
        a.nop(4)

    if PACKAT == 1: do_pack(False)
    issue_X(0); issue_W(0); issue_W(1); issue_X(1)
    for s_ in range(2, NW): issue_W(s_)
    if TOUCH:
        a.salu("s_lshl_b32 s29, s36, 2"); a.salu("s_add_u32 s29, s29, s24"); a.salu("s_mul_i32 s29, s29, 5120")
        a.valu("v_lshlrev_b32 v10, 7, v1", [10], [1])
        a.valu("v_cmp_gt_u32 vcc, 40, v1", [], [1], sdst=['vcc'])
        a.valu("v_mov_b32 v12, 0x7fffffff", [12], [])
        a.valu("v_cndmask_b32 v10, v12, v10, vcc", [10], [10, 12], ssrc=['vcc'])
        a.vmem_load(f"buffer_load_dword v{TMP}, v10, s[4:7], s29 offen{XNT}", [TMP], [10], tag='pf')
        a.salu("s_mul_i32 s29, s35, 80"); a.salu("s_mul_i32 s30, s24, 20"); a.salu("s_add_u32 s29, s29, s30")
        a.salu("s_lshl_b32 s29, s29, 13")
        a.valu("v_lshrrev_b32 v10, 1, v1", [10], [1])
        a.valu("v_lshlrev_b32 v10, 13, v10", [10], [10])
        a.valu("v_and_b32 v11, 1, v1", [11], [1])
        a.valu("v_lshl_add_u32 v10, v11, 7, v10", [10], [11, 10])
        a.valu("v_cndmask_b32 v10, v12, v10, vcc", [10], [10, 12], ssrc=['vcc'])
        a.vmem_load(f"buffer_load_dword v{TMP+1}, v10, s[12:15], s29 offen{WNT}", [TMP+1], [10], tag='pf')
    if not NOK0: issue_KV(0)
    a.valu("v_bfe_u32 v10, v6, 1, 3", [10], [6])
    a.valu("v_xor_b32 v10, v5, v10", [10], [5, 10])
    a.valu("v_lshlrev_b32 v10, 4, v10", [10], [10])
    a.valu("v_lshl_add_u32 v10, v6, 7, v10", [10], [6, 10])
    a.valu("v_lshl_add_u32 v10, v2, 12, v10", [10], [2, 10])
    a.valu(f"v_add_u32 v10, {XB}, v10", [10], [10])
    for sp in range(4):
        a.valu(f"v_xor_b32 v{XA+sp}, {sp*32}, v10", [XA+sp], [10])
    a.valu("v_and_b32 v10, 1, v8", [10], [8])
    a.valu("v_lshl_or_b32 v10, v9, 1, v10", [10], [9, 10])
    a.valu("v_lshrrev_b32 v11, 1, v8", [11], [8])
    for u in range(2):
        a.valu(f"v_lshl_or_b32 v12, v5, 1, {u}", [12], [5])
        a.valu("v_xor_b32 v13, v10, v12", [13], [10, 12])
        a.valu("v_lshlrev_b32 v13, 4, v13", [13], [13])
        a.valu("v_lshl_add_u32 v13, v11, 3, v13", [13], [11, 13])
        a.valu("v_lshl_add_u32 v14, v12, 2, v7", [14], [12, 7])
        a.valu("v_lshl_add_u32 v13, v14, 8, v13", [13], [14, 13])
        a.valu("v_lshl_add_u32 v13, v7, 6, v13", [13], [7, 13])
        for t in range(4):
            a.valu(f"v_xor_b32 v{WA+2*t+u}, {t*64}, v13", [WA+2*t+u], [13])
    a.valu("v_and_b32 v10, 3, v6", [10], [6])
    a.valu("v_bfe_u32 v11, v6, 2, 2", [11], [6])
    a.valu("v_lshl_or_b32 v10, v10, 2, v11", [10], [10, 11])
    a.valu("v_xor_b32 v10, v5, v10", [10], [5, 10])
    a.valu("v_lshlrev_b32 v10, 4, v10", [10], [10])
    a.valu("v_lshl_add_u32 v10, v6, 8, v10", [10], [6, 10])
    for s_ in range(8):
        a.valu(f"v_xor_b32 v{KA+s_}, {s_*32}, v10", [KA+s_], [10])
    a.valu("v_lshl_add_u32 v10, v2, 1, v9", [10], [2, 9])
    a.valu("v_lshlrev_b32 v10, 17, v10", [10], [10])
    a.valu("v_lshl_add_u32 v11, v5, 4, v4", [11], [5, 4])
    a.valu(f"v_lshl_add_u32 v{VO}, v11, 4, v10", [VO], [11, 10])
    read_X(0)
    jobs = []
    for ks in range(40):
        s_ = ks // 2; sp2 = ks % 2; c = ks // 4; sp = ks % 4
        for t in range(4):
            def rd(buf, tag, s_=s_, sp2=sp2, t=t):
                if NOMMA: return
                for u in range(2):
                    d = FB + 4*buf + 2*u
                    a.ds_read(f"ds_read_b64_tr_b16 {vr(d,2)}, v{WA+2*t+u} offset:{(s_%NW)*8192+sp2*4096}", [d, d+1], [WA+2*t+u], tag=tag)
            def mm(buf, ks=ks, t=t, c=c, sp=sp):
                if NOMMA: return
                a.mfma('32', OA+16*t, FB+4*buf, XF+16*(c % 2)+4*sp, None if ks == 0 else OA+16*t)
            jobs.append((rd, mm))
    def hook(j):
        if j % 8 == 0:
            s_ = j // 8
            a.wait_vm(('W', s_))
            a.barrier()
            if s_ >= 2 and s_ + NW - 2 < 20: issue_W(s_ + NW - 2)
            if s_ == 17 and not QONLY: issue_KV(1)
            if s_ == 19 and not QONLY:
                issue_KV(2)
                if AHEAD >= 3: issue_KV(3)
            if s_ in (0, 10): st(40 + s_ // 10)
        if j % 16 == 4 and j >= 16:
            c = j // 16
            if c + 2 < 10: issue_X(c + 2)
        if j == 4: issue_X(2)
        if j % 16 == 11:
            c = j // 16
            if c + 1 < 10: read_X(c + 1)
    a.wait_lg(('xf', 0))
    merge(a, jobs, [], 4, NB, hook=hook)
    for s_ in range(8):
        t = s_ >> 1
        for ii in range(4):
            r = OA + 16*t + 8*(s_ & 1) + 2*ii
            a.valu(f"v_cvt_pk_bf16_f32 v{QF+4*s_+ii}, v{r}, v{r+1}", [QF+4*s_+ii], [r, r+1])
    st.vt = 14
    a.salu(f"s_mov_b32 s30, 0x{f32bits(CSCALE):08x}")
    a.salu("s_lshl_b32 s29, s38, 20")
    srd_from(a, 4, "s72", "s73", "s29", 1 << 20, OWS_OFF)
    a.valu("v_lshrrev_b32 v10, 1, v8", [10], [8])
    a.valu("v_lshl_or_b32 v10, v9, 1, v10", [10], [9, 10])
    a.valu("v_and_b32 v11, 1, v8", [11], [8])
    for u in range(2):
        a.valu(f"v_or_b32 v12, {2*u}, v5", [12], [5])
        a.valu("v_xor_b32 v13, v10, v12", [13], [10, 12])
        a.valu("v_lshlrev_b32 v13, 4, v13", [13], [13])
        a.valu("v_lshl_add_u32 v13, v11, 3, v13", [13], [11, 13])
        a.valu("v_lshl_add_u32 v14, v12, 2, v7", [14], [12, 7])
        a.valu("v_lshl_add_u32 v13, v14, 8, v13", [13], [14, 13])
        a.valu("v_lshl_add_u32 v13, v7, 6, v13", [13], [7, 13])
        for t in range(4):
            a.valu(f"v_xor_b32 v{VA+2*t+u}, {t*64}, v13", [VA+2*t+u], [13])
    st(1)
    if QONLY: a.salu("s_endpgm")

    base = {'K': 0, 'V': 0}
    def rebase(which, slot):
        regs = range(KA, KA+8) if which == 'K' else range(VA, VA+8)
        need = base[which]
        if slot == 4: need = SLOT
        if slot == 0: need = 0
        if need != base[which]:
            for r in regs:
                if need > base[which]:
                    a.valu(f"v_add_u32 v{r}, {need-base[which]}, v{r}", [r], [r])
                else:
                    a.valu(f"v_subrev_u32 v{r}, {base[which]-need}, v{r}", [r], [r])
            base[which] = need
        return slot * SLOT - base[which]
    def V(text, dst, src, **kw):
        return lambda: a.valu(text, dst, src, **kw)
    def part1(j):
        SS = SB[j % 2]; T = j
        o = []
        if E("NOVALU", 0): return o
        for c_, tr in ((0, T0), (16, T1)):
            o.append(V(f"v_max3_f32 v{tr}, v{SS+c_}, v{SS+c_+1}, v{SS+c_+2}", [tr], [SS+c_, SS+c_+1, SS+c_+2]))
        for k in range(3, 15, 2):
            for c_, tr in ((0, T0), (16, T1)):
                o.append(V(f"v_max3_f32 v{tr}, v{tr}, v{SS+c_+k}, v{SS+c_+k+1}", [tr], [tr, SS+c_+k, SS+c_+k+1]))
        o.append(V(f"v_max3_f32 v{T0}, v{T0}, v{T1}, v{SS+15}", [T0], [T0, T1, SS+15]))
        o.append(V(f"v_max_f32 v{T0}, v{T0}, v{SS+31}", [T0], [T0, SS+31]))
        o.append(V(f"v_mov_b32 v{T1}, v{T0}", [T1], [T0]))
        o.append(V(f"v_permlane32_swap_b32 v{T0}, v{T1}", [T0, T1], [T0, T1], kind='permlane'))
        if T == 0:
            o.append(V(f"v_max_f32 v{M}, v{T0}, v{T1}", [M], [T0, T1]))
        else:
            o.append(V(f"v_max3_f32 v{T2}, v{T0}, v{T1}, v{M}", [T2], [T0, T1, M]))
            o.append(V(f"v_sub_f32 v{T3}, v{M}, v{T2}", [T3], [M, T2]))
            o.append(V(f"v_mul_f32 v{T3}, s30, v{T3}", [T3], [T3]))
            o.append(V(f"v_exp_f32 v{AL}, v{T3}", [AL], [T3], trans=True))
            o.append(V(f"v_mov_b32 v{M}, v{T2}", [M], [T2]))
        o.append(V(f"v_mul_f32 v{MC}, s30, v{M}", [MC], [M]))
        for i in range(32 if not E("NOFMA", 0) else 0):
            o.append(V(f"v_fma_f32 v{SS+i}, v{SS+i}, s30, -v{MC}", [SS+i], [SS+i, MC]))
        return o
    def part2(j):
        SS = SB[j % 2]; T = j
        o = []; resc = []
        if E("NOVALU", 0): return o
        if T > 0 and not E("NORESC", 0):
            for i in range(0, 64, 2):
                resc.append(V(f"v_pk_mul_f32 {vr(OA+i,2)}, {vr(OA+i,2)}, {vr(AL,2)} op_sel_hi:[1,0]", [OA+i, OA+i+1], [OA+i, OA+i+1, AL]))
        for i in range(32):
            if not E("NOEXP", 0): o.append(V(f"v_exp_f32 v{SS+i}, v{SS+i}", [SS+i], [SS+i], trans=True))
            if resc: o.append(resc.pop(0))
        for c_, tr in ((0, T0), (8, T1), (16, T2), (24, T3)):
            o.append(V(f"v_add_f32 v{tr}, v{SS+c_}, v{SS+c_+1}", [tr], [SS+c_, SS+c_+1]))
        for k in range(2, 8):
            for c_, tr in ((0, T0), (8, T1), (16, T2), (24, T3)):
                o.append(V(f"v_add_f32 v{tr}, v{tr}, v{SS+c_+k}", [tr], [tr, SS+c_+k]))
        o.append(V(f"v_add_f32 v{T0}, v{T0}, v{T1}", [T0], [T0, T1]))
        o.append(V(f"v_add_f32 v{T2}, v{T2}, v{T3}", [T2], [T2, T3]))
        if T == 0:
            o.append(V(f"v_add_f32 v{L}, v{T0}, v{T2}", [L], [T0, T2]))
        else:
            o.append(V(f"v_add_f32 v{T0}, v{T0}, v{T2}", [T0], [T0, T2]))
            o.append(V(f"v_fma_f32 v{L}, v{L}, v{AL}, v{T0}", [L], [L, AL, T0]))
        for i in range(16):
            o.append(V(f"v_cvt_pk_bf16_f32 v{SS+i}, v{SS+2*i}, v{SS+2*i+1}", [SS+i], [SS+2*i, SS+2*i+1]))
        return o

    for p in range(NP):
        kind, j = seq[p]
        slot = PERM[p % 5]
        off = rebase(kind, slot)
        a.wait_vm(('KV', p))
        a.barrier()
        if p == 0 and AHEAD >= 4: issue_KV(4)
        if p >= 1 and p + AHEAD < NP: issue_KV(p + AHEAD)
        st(3 + p)
        jobs = []
        if NOMMA: continue
        if kind == 'K':
            SS = SB[j % 2]
            for kt in range(2):
                for s_ in range(8):
                    def rd(buf, tag, kt=kt, s_=s_):
                        d = FB + 4*buf
                        a.ds_read(f"ds_read_b128 {vr(d,4)}, v{KA+s_} offset:{off+kt*8192}", range(d, d+4), [KA+s_], tag=tag)
                    def mm(buf, kt=kt, s_=s_, SS=SS):
                        a.mfma('32', SS+16*kt, FB+4*buf, QF+4*s_, None if s_ == 0 else SS+16*kt)
                    jobs.append((rd, mm))
            merge(a, jobs, part2(j - 1) if j > 0 else [], 5, NB, lead=8)
            if j == 0:
                for f in part1(0): f()
        else:
            if j == 7:
                for f in part2(7): f()
            PP = SB[j % 2]
            for jq in range(4):
                for t in range(4):
                    def rd(buf, tag, jq=jq, t=t):
                        for u in range(2):
                            d = FB + 4*buf + 2*u
                            a.ds_read(f"ds_read_b64_tr_b16 {vr(d,2)}, v{VA+2*t+u} offset:{off+jq*4096}", [d, d+1], [VA+2*t+u], tag=tag)
                    def mm(buf, jq=jq, t=t, j=j, PP=PP):
                        first = (j == 0 and jq == 0)
                        a.mfma('32', OA+16*t, FB+4*buf, PP+4*jq, None if first else OA+16*t)
                    jobs.append((rd, mm))
            merge(a, jobs, part1(j + 1) if j < 7 else [], 4, NB, lead=6)
    TMPO = SB[1]
    a.valu(f"v_mov_b32 v{T0}, v{L}", [T0], [L])
    a.valu(f"v_mov_b32 v{T1}, v{L}", [T1], [L])
    a.valu(f"v_permlane32_swap_b32 v{T0}, v{T1}", [T0, T1], [T0, T1], kind='permlane')
    a.valu(f"v_add_f32 v{T0}, v{T0}, v{T1}", [T0], [T0, T1])
    a.valu(f"v_rcp_f32 v{AL}, v{T0}", [AL], [T0], trans=True)
    a.salu("s_lshl_b32 s29, s37, 12")
    for t in range(4):
        for i in range(0, 16, 2):
            r = OA + 16*t + i
            a.valu(f"v_pk_mul_f32 {vr(r,2)}, {vr(r,2)}, {vr(AL,2)} op_sel_hi:[1,0]", [r, r+1], [r, r+1, AL])
        for piece in range(2):
            d = TMPO + 8*t + 4*piece
            for k, rr in enumerate((4*piece, 4*piece+2, 8+4*piece, 8+4*piece+2)):
                r = OA + 16*t + rr
                a.valu(f"v_cvt_pk_bf16_f32 v{d+k}, v{r}, v{r+1}", [d+k], [r, r+1])
            a.vmem_store(f"buffer_store_dwordx4 {vr(d,4)}, v{VO}, s[4:7], s29 offen offset:{t*1024+piece*512} {OST}", [VO], range(d, d+4), tag='O')
    st(35)
    VP = 14
    spin(a, VP, 15, "s[16:19]", "0", "0", want_equal=False)
    a.valu(f"v_readfirstlane_b32 s94, v{VP}", [], [VP], sdst=['s94'], kind='readlane')
    a.nop(5)
    a.barrier()
    a.salu("s_mov_b32 s29, 0")
    srd_from(a, 16, "s72", "s73", "s29", 1 << 20, FLG_OFF)
    a.salu("s_lshl_b32 s29, s38, 8"); a.salu("s_lshr_b32 s30, s36, 2"); a.salu("s_lshl_b32 s30, s30, 7"); a.salu("s_add_u32 s29, s29, s30")
    a.salu("s_and_b32 s30, s36, 3"); a.salu("s_lshl_b32 s30, s30, 4"); a.salu("s_add_u32 s29, s29, s30")
    a.salu("s_lshl_b32 s30, s34, 2"); a.salu("s_add_u32 s29, s29, s30"); a.salu(f"s_add_u32 s29, s29, {FO_OFF}")
    a.valu(f"v_mov_b32 v{VP}, s94", [VP], [], ssrc=['s94'])
    a.vmem_store(f"buffer_store_dword v{VP}, v15, s[16:19], s29 offen sc1", [15], [VP], tag='F')
    a.salu("s_cmp_ge_u32 s2, 256")
    a.salu("s_cbranch_scc1 attn_done")
    a.salu("s_setprio 0")
    do_pack(True)
    a.wait_vm_all()
    a.barrier()
    a.salu("s_lshl_b32 s29, s33, 9"); a.salu("s_lshl_b32 s30, s77, 2"); a.salu("s_add_u32 s29, s29, s30")
    a.salu(f"s_add_u32 s29, s29, {FW_OFF}")
    a.valu(f"v_mov_b32 v{VP}, s94", [VP], [])
    a.vmem_store(f"buffer_store_dword v{VP}, v15, s[16:19], s29 offen sc1", [15], [VP], tag='F')
    st(36)
    ACC, RING = 16, 96
    VL16, VL16B, VOF, VST, VFL = 246, 247, 248, 252, 253
    a.salu("s_bfe_u32 s34, s31, 0x10001")
    a.salu("s_and_b32 s35, s31, 1")
    a.salu("s_and_b32 s36, s32, 7")
    a.salu("s_lshl_b32 s34, s34, 3")
    a.salu("s_add_u32 s34, s34, s36")
    a.salu("s_lshr_b32 s36, s32, 3")
    a.salu("s_lshl_b32 s35, s35, 2")
    a.salu("s_add_u32 s35, s35, s36")
    a.salu("s_lshl_b32 s38, s33, 3"); a.salu("s_add_u32 s38, s38, s35")
    a.valu(f"v_lshlrev_b32 v{VL16}, 4, v1", [VL16], [1])
    a.valu(f"v_add_u32 v{VL16B}, 0x1000, v{VL16}", [VL16B], [VL16])
    for qt in range(4):
        a.valu(f"v_add_u32 v{VOF+qt}, {qt*131072}, v{VL16}", [VOF+qt], [VL16])
    a.salu("s_mul_i32 s29, s38, 655360")
    srd_from(a, 12, "s72", "s73", "s29", 655360, WOP_OFF)
    a.salu("s_lshl_b32 s29, s33, 4"); a.salu("s_add_u32 s29, s29, s34"); a.salu("s_lshl_b32 s29, s29, 19")
    srd_from(a, 4, "s72", "s73", "s29", 524288, OWS_OFF)
    a.salu("s_mul_i32 s29, s34, 163840")
    a.salu("s_mul_i32 s30, s33, 1280"); a.salu("s_add_u32 s29, s29, s30")
    a.salu("s_mul_i32 s30, s35, 160"); a.salu("s_add_u32 s29, s29, s30")
    a.salu("s_sub_u32 s30, 2621440, s29")
    srd_from(a, 20, "s68", "s69", "s29", "s30")
    a.valu("v_lshl_add_u32 v10, v9, 6, v4", [10], [9, 4])
    a.valu("v_lshl_add_u32 v10, v2, 4, v10", [10], [2, 10])
    a.valu(f"v_lshlrev_b32 v{VFL}, 2, v10", [VFL], [10])
    a.salu("s_lshl_b32 s29, s33, 9"); a.salu(f"s_add_u32 s29, s29, {FW_OFF}")
    spin(a, VP, VFL, "s[16:19]", "s29", "s94", sleep=8)
    st(37)
    a.valu(f"v_lshl_add_u32 v10, v2, 2, v8", [10], [2, 8])
    a.valu(f"v_lshlrev_b32 v{VFL}, 2, v10", [VFL], [10])
    a.salu("s_lshr_b32 s29, s34, 1"); a.salu("s_lshl_b32 s30, s33, 3"); a.salu("s_add_u32 s29, s29, s30")
    a.salu("s_lshl_b32 s25, s29, 8"); a.salu(f"s_add_u32 s25, s25, {FO_OFF}")
    a.salu("s_lshl_b32 s26, s24, 4")
    a.salu("s_mul_i32 s27, s26, 5120")
    a.salu("s_lshl_b32 s28, s26, 10")
    D = 4
    def kk(k): return (k >> 4) * 64 + (k & 15)
    def issue_A(k):
        slot = k % D
        a.salu(f"s_add_u32 s29, s27, {kk(k)*5120}")
        for nt_ in range(5):
            d = RING + 36*slot + 4*nt_
            if nt_ < 4:
                a.vmem_load(f"buffer_load_dwordx4 {vr(d,4)}, v{VL16}, s[12:15], s29 offen offset:{nt_*1024} sc1", range(d, d+4), [VL16], tag=('A', k))
            else:
                a.vmem_load(f"buffer_load_dwordx4 {vr(d,4)}, v{VL16B}, s[12:15], s29 offen sc1", range(d, d+4), [VL16B], tag=('A', k))
    def issue_B(k):
        slot = k % D
        a.salu(f"s_add_u32 s30, s28, {kk(k)*1024}")
        for qt in range(4):
            d = RING + 36*slot + 20 + 4*qt
            a.vmem_load(f"buffer_load_dwordx4 {vr(d,4)}, v{VOF+qt}, s[4:7], s30 offen sc1", range(d, d+4), [VOF+qt], tag=('B', k))
    for rnd in range(2):
        k0 = 16 * rnd
        for k in range(k0, k0 + D): issue_A(k)
        if rnd == 1: a.salu("s_add_u32 s25, s25, 128")
        spin(a, VP, VFL, "s[16:19]", "s25", "s94", sleep=(8 if rnd == 0 else 4))
        st(38 + 2*rnd)
        for k in range(k0, k0 + D): issue_B(k)
        for k in range(k0, k0 + 16):
            slot = k % D
            a.wait_vm(('B', k))
            for nt_ in range(5):
                for qt in range(4):
                    d = ACC + 4*(nt_*4 + qt)
                    a.mfma('16', d, RING + 36*slot + 4*nt_, RING + 36*slot + 20 + 4*qt, None if k == 0 else d)
            if k + D < k0 + 16:
                issue_A(k + D); issue_B(k + D)
        st(39 + 2*rnd + (3 if rnd else 0))
    a.salu("s_mul_i32 s27, s24, 20480")
    a.valu(f"v_add_u32 v11, s27, v{VL16}", [11], [VL16])
    for tile in range(20):
        d = ACC + 4*tile
        a.ds_write(f"ds_write_b128 v11, {vr(d,4)} offset:{tile*1024}", [11] + list(range(d, d+4)))
        if len(a.lgq) >= 12: a.wait_lg_all()
    a.wait_lg_all()
    a.barrier()
    a.salu("s_lshl_b32 s29, s24, 10")
    a.valu(f"v_add_u32 v11, s29, v{VL16}", [11], [VL16])
    a.valu(f"v_add_u32 v12, 0xa000, v11", [12], [11])
    for nt_ in range(5):
        for src in range(4):
            d = RING + 16*nt_ + 4*src
            ar = 11 if src < 2 else 12
            a.ds_read(f"ds_read_b128 {vr(d,4)}, v{ar} offset:{(src%2)*20480 + nt_*4096}", range(d, d+4), [ar], tag=('R', nt_))
        if nt_ == 2: a.wait_lg_all()
    a.wait_lg_all()
    a.valu("v_lshl_add_u32 v10, v2, 4, v4", [10], [2, 4])
    a.valu("v_mul_u32_u24 v10, 0xa00, v10", [10], [10])
    a.valu(f"v_lshl_add_u32 v{VST}, v3, 3, v10", [VST], [3, 10])
    for nt_ in range(5):
        d = RING + 16*nt_
        for k in range(4):
            a.valu(f"v_add_f32 v{d+k}, v{d+k}, v{d+4+k}", [d+k], [d+k, d+4+k])
            a.valu(f"v_add_f32 v{d+8+k}, v{d+8+k}, v{d+12+k}", [d+8+k], [d+8+k, d+12+k])
        for k in range(4):
            a.valu(f"v_add_f32 v{d+k}, v{d+k}, v{d+8+k}", [d+k], [d+k, d+8+k])
        a.valu(f"v_cvt_pk_bf16_f32 v{d+4}, v{d}, v{d+1}", [d+4], [d, d+1])
        a.valu(f"v_cvt_pk_bf16_f32 v{d+5}, v{d+2}, v{d+3}", [d+5], [d+2, d+3])
        a.vmem_store(f"buffer_store_dwordx2 {vr(d+4,2)}, v{VST}, s[20:23], 0 offen offset:{nt_*32}", [VST], [d+4, d+5], tag='st')
    st(45)
    a.label("attn_done")
    a.salu("s_endpgm")

def gen_oproj(a):
    ACC, RING = 16, 96
    VL16, VL16B, VOF, VST = 246, 247, 248, 252
    D = 4; NK = 16
    a.label("oproj_kernel")
    a.salu("s_cmp_ge_u32 s2, 256")
    a.salu("s_cbranch_scc1 oproj_done")
    kernargs(a)
    a.salu("s_and_b32 s31, s2, 7")
    a.salu("s_lshr_b32 s32, s2, 3")
    a.salu("s_lshr_b32 s33, s31, 2")
    a.salu("s_bfe_u32 s34, s31, 0x10001")
    a.salu("s_and_b32 s35, s31, 1")
    a.salu("s_and_b32 s36, s32, 7")
    a.salu("s_lshl_b32 s34, s34, 3")
    a.salu("s_add_u32 s34, s34, s36")
    a.salu("s_lshr_b32 s36, s32, 3")
    a.salu("s_lshl_b32 s35, s35, 2")
    a.salu("s_add_u32 s35, s35, s36")
    a.salu("s_lshl_b32 s38, s33, 3"); a.salu("s_add_u32 s38, s38, s35")
    lane_consts(a)
    a.valu(f"v_lshlrev_b32 v{VL16}, 4, v1", [VL16], [1])
    a.valu(f"v_add_u32 v{VL16B}, 0x1000, v{VL16}", [VL16B], [VL16])
    for qt in range(4):
        a.valu(f"v_add_u32 v{VOF+qt}, {qt*131072}, v{VL16}", [VOF+qt], [VL16])
    a.salu("s_waitcnt lgkmcnt(0)")
    a.salu("s_mul_i32 s29, s38, 655360")
    srd_from(a, 12, "s72", "s73", "s29", 655360, WOP_OFF)
    a.salu("s_lshl_b32 s29, s33, 4"); a.salu("s_add_u32 s29, s29, s34"); a.salu("s_lshl_b32 s29, s29, 19")
    srd_from(a, 16, "s72", "s73", "s29", 524288, OWS_OFF)
    a.salu("s_lshl_b32 s26, s24, 4")
    a.salu("s_mul_i32 s27, s26, 5120")
    a.salu("s_lshl_b32 s28, s26, 10")
    def issue(k):
        slot = k % D
        a.salu(f"s_add_u32 s29, s27, {k*5120}")
        a.salu(f"s_add_u32 s30, s28, {k*1024}")
        for nt_ in range(5):
            d = RING + 36*slot + 4*nt_
            if nt_ < 4:
                a.vmem_load(f"buffer_load_dwordx4 {vr(d,4)}, v{VL16}, s[12:15], s29 offen offset:{nt_*1024}", range(d, d+4), [VL16], tag=('k', k))
            else:
                a.vmem_load(f"buffer_load_dwordx4 {vr(d,4)}, v{VL16B}, s[12:15], s29 offen", range(d, d+4), [VL16B], tag=('k', k))
        for qt in range(4):
            d = RING + 36*slot + 20 + 4*qt
            a.vmem_load(f"buffer_load_dwordx4 {vr(d,4)}, v{VOF+qt}, s[16:19], s30 offen", range(d, d+4), [VOF+qt], tag=('k', k))
    for k in range(D): issue(k)
    a.salu("s_mul_i32 s29, s34, 163840")
    a.salu("s_mul_i32 s30, s33, 1280"); a.salu("s_add_u32 s29, s29, s30")
    a.salu("s_mul_i32 s30, s35, 160"); a.salu("s_add_u32 s29, s29, s30")
    a.salu("s_sub_u32 s30, 2621440, s29")
    srd_from(a, 20, "s68", "s69", "s29", "s30")
    st = Stamper(a, 14, 15, wshift=3)
    st.setup()
    st(0)
    for k in range(NK):
        slot = k % D
        a.wait_vm(('k', k))
        for nt_ in range(5):
            for qt in range(4):
                d = ACC + 4*(nt_*4 + qt)
                a.mfma('16', d, RING + 36*slot + 4*nt_, RING + 36*slot + 20 + 4*qt, None if k == 0 else d)
        if k + D < NK: issue(k + D)
        if k in (0, 7): st(1 + k // 7)
    st(3)
    a.salu("s_mul_i32 s27, s24, 20480")
    a.valu(f"v_add_u32 v11, s27, v{VL16}", [11], [VL16])
    for tile in range(20):
        d = ACC + 4*tile
        a.ds_write(f"ds_write_b128 v11, {vr(d,4)} offset:{tile*1024}", [11] + list(range(d, d+4)))
        if len(a.lgq) >= 12: a.wait_lg_all()
    a.wait_lg_all()
    a.barrier()
    a.salu("s_lshl_b32 s29, s24, 10")
    for g in range(3):
        a.valu(f"v_add_u32 v{10+g}, s29, v{VL16}", [10+g], [VL16])
        if g: a.valu(f"v_add_u32 v{10+g}, {g*61440}, v{10+g}", [10+g], [10+g])
    a.valu("v_and_b32 v13, 3, v2", [13], [2])
    a.valu("v_lshl_add_u32 v13, v13, 4, v4", [13], [13, 4])
    a.valu("v_mul_u32_u24 v13, 0xa00, v13", [13], [13])
    a.valu("v_lshl_add_u32 v13, v3, 3, v13", [13], [3, 13])
    a.valu("v_lshrrev_b32 v14, 2, v2", [14], [2])
    a.valu(f"v_lshl_add_u32 v{VST}, v14, 5, v13", [VST], [14, 13])
    lskip = a.newlabel("RS")
    for i in range(3):
        if i == 2:
            a.salu("s_cmp_ge_u32 s24, 4")
            a.salu(f"s_cbranch_scc1 {lskip}")
        for src in range(8):
            d = RING + 32*i + 4*src
            ar = 10 + src // 3
            a.ds_read(f"ds_read_b128 {vr(d,4)}, v{ar} offset:{(src%3)*20480 + i*8192}", range(d, d+4), [ar], tag=('R', i))
        a.wait_lg_all()
        d = RING + 32*i
        for step in (4, 2, 1):
            for q in range(step):
                for k in range(4):
                    x, y = d + 4*q + k, d + 4*(q+step) + k
                    a.valu(f"v_add_f32 v{x}, v{x}, v{y}", [x], [x, y])
        a.valu(f"v_cvt_pk_bf16_f32 v{d+4}, v{d}, v{d+1}", [d+4], [d, d+1])
        a.valu(f"v_cvt_pk_bf16_f32 v{d+5}, v{d+2}, v{d+3}", [d+5], [d+2, d+3])
        a.vmem_store(f"buffer_store_dwordx2 {vr(d+4,2)}, v{VST}, s[20:23], 0 offen offset:{i*64}", [VST], [d+4, d+5], tag='st')
    a.label(lskip)
    st(4)
    a.label("oproj_done")
    a.salu("s_endpgm")

def kd(name, vgpr):
    return f""".p2align 6
.amdhsa_kernel {name}
  .amdhsa_next_free_vgpr {vgpr}
  .amdhsa_next_free_sgpr 102
  .amdhsa_accum_offset {vgpr}
  .amdhsa_group_segment_fixed_size 0
  .amdhsa_kernarg_size 104
  .amdhsa_user_sgpr_count 2
  .amdhsa_user_sgpr_kernarg_segment_ptr 1
  .amdhsa_system_sgpr_workgroup_id_x 1
.end_amdhsa_kernel
"""

def main(out):
    hdr = f"""; Generated by gen/gen_v7.py (hand-written generator).
; @launch grid=(512,1,1) block=(256,1,1) lds=81920
.amdgcn_target "amdgcn-amd-amdhsa--gfx950"
.text
.globl {KNAME}
.p2align 8
.type {KNAME},@function
"""
    a = Asm()
    gen_attn(a)
    tail = '.section .rodata,"a"\n' + kd(KNAME, 256)
    open(out, "w").write(hdr + a.text() + tail)

if __name__ == "__main__":
    main(sys.argv[1] if len(sys.argv) > 1 else f"cdna_kernels/{NAME}.s")
```

```python
import sys, struct, os, math
sys.path.insert(0, 'gen')
from asmlib import *

NAME = "concat_heads__gqa_block_cached__mha_block_cached__near_ridge"
CSCALE = (128 ** -0.5) * math.log2(math.e)
def f32bits(x): return struct.unpack('<I', struct.pack('<f', x))[0]
E = lambda k, d: int(os.environ.get(k, str(d)))
STAMP = E("STAMP", 0); TOUCH = E("TOUCH", 1); AHEAD = E("AHEAD", 4); PRIO = E("PRIO", 1)
WNT = " nt" if E("WNT", 0) else ""
PACKAT = 0 if E("NOPACK", 0) else E("PACKAT", 2)
KVNT = " nt" if E("KVNT", 1) else ""
XNT = " nt" if E("XNT", 0) else ""
QONLY = E("QONLY", 0); NOPACK = E("NOPACK", 0); NOK0 = E("NOK0", 0); NOMMA = E("NOMMA", 0); NODMA = E("NODMA", 0); NOX = E("NOX", 0); NOW = E("NOW", 0)
OST = os.environ.get("OST", "")
OWS_OFF, WOP_OFF, STAMP_OFF = 0, 32 << 20, 64 << 20

def srd_from(a, d, base_lo, base_hi, off_sreg, size, const_off=0):
    a.salu(f"s_add_u32 s{d}, {base_lo}, {off_sreg}")
    a.salu(f"s_addc_u32 s{d+1}, {base_hi}, 0")
    if const_off:
        a.salu(f"s_add_u32 s{d}, s{d}, {const_off}")
        a.salu(f"s_addc_u32 s{d+1}, s{d+1}, 0")
    a.salu(f"s_and_b32 s{d+1}, s{d+1}, 0xffff")
    a.salu(f"s_mov_b32 s{d+2}, {size}")
    a.salu(f"s_mov_b32 s{d+3}, 0x00020000")

class Stamper:
    def __init__(self, a, vtmp, vzero, wshift=2):
        self.a, self.vt, self.vz, self.ws = a, vtmp, vzero, wshift
    def setup(self):
        a = self.a
        if not STAMP: return
        a.salu("s_mov_b32 s78, 0")
        srd_from(a, 80, "s72", "s73", "s78", 1 << 20, STAMP_OFF)
        a.salu(f"s_lshl_b32 s78, s2, {self.ws}"); a.salu("s_add_u32 s78, s78, s24"); a.salu("s_lshl_b32 s78, s78, 8")
    def __call__(self, idx):
        a = self.a
        if not STAMP: return
        a.wait_lg_all()
        a.salu("s_memrealtime s[90:91]")
        a.salu("s_waitcnt lgkmcnt(0)")
        a.valu(f"v_mov_b32 v{self.vt}, s90", [self.vt], [])
        a.vmem_store(f"buffer_store_dword v{self.vt}, v{self.vz}, s[80:83], s78 offen offset:{idx*4}", [self.vz], [self.vt], tag='stamp')

def merge(a, jobs, valus, PD, NB, lead=0, hook=None):
    n = len(jobs); vi = 0
    for i in range(-PD, n):
        if i + PD < n:
            if hook: hook(i + PD)
            jobs[i + PD][0]((i + PD) % NB, ('job', i + PD))
        if i == -1:
            for _ in range(min(lead, len(valus) - vi)):
                valus[vi](); vi += 1
        if i >= 0:
            a.wait_lg(('job', i))
            jobs[i][1](i % NB)
            rem = len(valus) - vi
            k = -(-rem // (n - i))
            for _ in range(k):
                valus[vi](); vi += 1
    while vi < len(valus):
        valus[vi](); vi += 1

def kernargs(a):
    a.salu("s_load_dwordx16 s[48:63], s[0:1], 0")
    a.salu("s_load_dwordx8 s[64:71], s[0:1], 64")
    a.salu("s_load_dwordx2 s[72:73], s[0:1], 96")

def lane_consts(a):
    a.valu("v_and_b32 v1, 63, v0", [1], [0])
    a.valu("v_lshrrev_b32 v2, 6, v0", [2], [0])
    a.valu("v_readfirstlane_b32 s24, v2", [], [2], sdst=['s24'], kind='readlane')
    a.valu("v_lshrrev_b32 v3, 4, v1", [3], [1])
    a.valu("v_and_b32 v4, 15, v1", [4], [1])
    a.valu("v_lshrrev_b32 v5, 5, v1", [5], [1])
    a.valu("v_and_b32 v6, 31, v1", [6], [1])
    a.valu("v_bfe_u32 v7, v1, 2, 2", [7], [1])
    a.valu("v_and_b32 v8, 3, v1", [8], [1])
    a.valu("v_and_b32 v9, 1, v3", [9], [3])
    a.valu("v_mov_b32 v15, 0", [15], [])

def gen_attn(a):
    QF = 16
    OA, SB, FB = 48, [112, 144], 176
    KA, VA, VKV = 200, 208, 216
    M, L, AL, MC, T0, T1, T2, T3 = 220, 221, 222, 224, 225, 226, 227, 228
    VO = 229
    NB = 6
    SLOT = 16384
    NW = E("NW", 4)
    XB = NW * 8192
    a.label("attn_kernel")
    a.salu("s_cmp_ge_u32 s2, 512")
    a.salu("s_cbranch_scc1 attn_done")
    kernargs(a)
    a.salu("s_and_b32 s31, s2, 7")
    a.salu("s_lshr_b32 s32, s2, 3")
    a.salu("s_lshr_b32 s33, s31, 2")
    a.salu("s_and_b32 s34, s31, 3")
    a.salu("s_and_b32 s35, s32, 7")
    a.salu("s_lshr_b32 s36, s32, 3")
    if E("HSPREAD", 1):
        a.salu("s_lshl_b32 s37, s36, 2")
        a.salu("s_add_u32 s37, s37, s34")
    else:
        a.salu("s_lshl_b32 s37, s34, 3")
        a.salu("s_add_u32 s37, s37, s36")
    a.salu("s_lshl_b32 s38, s33, 3")
    a.salu("s_add_u32 s38, s38, s35")
    lane_consts(a)
    if PRIO:
        lp = a.newlabel("PR")
        a.salu("s_cmp_ge_u32 s2, 256")
        a.salu(f"s_cbranch_scc1 {lp}")
        a.salu("s_setprio 2")
        a.label(lp)
    for jj in range(4):
        a.valu(f"v_lshl_or_b32 v10, v3, 2, {jj}", [10], [3])
        a.valu("v_xor_b32 v10, v4, v10", [10], [4, 10])
        a.valu("v_lshlrev_b32 v10, 4, v10", [10], [10])
        a.valu(f"v_lshl_add_u32 v{VKV+jj}, v3, 8, v10", [VKV+jj], [3, 10])
    XF, WA, VW, VX, XA, TMP = SB[0], VA, SB[1], SB[1]+2, SB[1]+6, SB[1]+10
    for jj in range(2):
        a.valu(f"v_lshl_or_b32 v10, v2, 1, {jj}", [10], [2])
        a.valu("v_and_b32 v10, 3, v10", [10], [10])
        a.valu("v_lshl_or_b32 v10, v3, 2, v10", [10], [3, 10])
        a.valu("v_xor_b32 v10, v4, v10", [10], [4, 10])
        a.valu("v_lshlrev_b32 v10, 4, v10", [10], [10])
        a.valu("v_lshl_add_u32 v10, v3, 13, v10", [10], [3, 10])
        a.valu(f"v_add_u32 v{VW+jj}, {jj*(4*8192-1024)}, v10", [VW+jj], [10])
    a.valu("v_lshrrev_b32 v11, 3, v1", [11], [1])
    a.valu("v_mul_u32_u24 v11, 0x500, v11", [11], [11])
    a.valu("v_and_b32 v12, 7, v1", [12], [1])
    for jj in range(4):
        a.valu(f"v_add_u32 v10, {(4*jj) & 7}, v3", [10], [3])
        a.valu("v_xor_b32 v10, v12, v10", [10], [12, 10])
        a.valu("v_lshl_add_u32 v10, v10, 4, v11", [10], [10, 11])
        a.valu(f"v_add_u32 v{VX+jj}, {jj*(8*1280-1024)}, v10", [VX+jj], [10])
    a.salu("s_waitcnt lgkmcnt(0)")
    a.salu("s_cmp_eq_u32 s33, 1")
    a.salu("s_cselect_b64 s[40:41], s[58:59], s[48:49]")
    a.salu("s_cselect_b64 s[42:43], s[60:61], s[50:51]")
    a.salu("s_cselect_b64 s[44:45], s[62:63], s[52:53]")
    a.salu("s_cselect_b64 s[46:47], s[64:65], s[54:55]")
    a.salu("s_cselect_b64 s[74:75], s[66:67], s[56:57]")
    a.salu("s_mul_i32 s29, s35, 163840")
    srd_from(a, 4, "s40", "s41", "s29", 163840)
    a.salu("s_lshl_b32 s93, s37, 8")
    a.salu("s_sub_u32 s30, 5242880, s93")
    srd_from(a, 12, "s46", "s47", "s93", "s30")
    a.salu("s_lshl_b32 s29, s35, 5"); a.salu("s_add_u32 s29, s29, s37"); a.salu("s_lshl_b32 s29, s29, 17")
    srd_from(a, 20, "s42", "s43", "s29", 131072)
    srd_from(a, 96, "s44", "s45", "s29", 131072)
    a.salu("s_lshl_b32 s26, s24, 11")
    a.salu("s_lshl_b32 s27, s24, 16")
    a.salu("s_lshl_b32 s92, s24, 12")
    a.salu(f"s_add_u32 s28, s92, {XB}")
    a.salu("s_mul_i32 s25, s24, 40960")
    st = Stamper(a, QF + 31, 15)
    st.setup()
    st(0)

    seq = [('K', 0)]
    for i in range(7): seq += [('K', i + 1), ('V', i)]
    seq += [('V', 7)]
    NP = len(seq)
    PERM = [4, 2, 0, 3, 1]
    def issue_KV(p):
        if NODMA: return
        kind, j = seq[p]
        slot = PERM[p % 5]
        srd = "s[20:23]" if kind == 'K' else "s[96:99]"
        a.salu(f"s_add_u32 m0, s92, {slot*SLOT}", m0=True)
        a.salu(f"s_add_u32 s29, s92, {j*16384}")
        for jj in range(4):
            a.vmem_dma(f"buffer_load_dwordx4 v{VKV+jj}, {srd}, s29 offen offset:{jj*1024}{KVNT} lds", [VKV+jj], tag=('KV', p))
    def issue_W(s_):
        if NODMA or NOW: return
        buf = s_ % NW
        a.salu(f"s_add_u32 m0, s26, {buf*8192}", m0=True)
        a.salu(f"s_add_u32 s29, s27, {s_*32*8192}")
        for jj in range(2):
            a.vmem_dma(f"buffer_load_dwordx4 v{VW+jj}, s[12:15], s29 offen offset:{jj*1024}{WNT} lds", [VW+jj], tag=('W', s_))
    def issue_X(c):
        if NODMA or NOX: return
        a.salu(f"s_add_u32 m0, s28, {(c%2)*16384}", m0=True)
        a.salu(f"s_add_u32 s29, s25, {c*128}")
        for jj in range(4):
            a.vmem_dma(f"buffer_load_dwordx4 v{VX+jj}, s[4:7], s29 offen offset:{jj*1024}{XNT} lds", [VX+jj], tag=('X', c))
    def read_X(c):
        a.wait_vm(('X', c))
        if NOMMA: return
        for sp in range(4):
            d = XF + 16*(c % 2) + 4*sp
            a.ds_read(f"ds_read_b128 {vr(d,4)}, v{XA+sp} offset:{(c%2)*16384}", range(d, d+4), [XA+sp], tag=('xf', c))

    BD = E("BDELAY", 0)
    if BD:
        ld, l2 = a.newlabel("BD"), a.newlabel("BE")
        a.salu("s_cmp_lt_u32 s2, 256")
        a.salu(f"s_cbranch_scc1 {l2}")
        a.salu("s_memrealtime s[88:89]"); a.salu("s_waitcnt lgkmcnt(0)")
        a.salu(f"s_add_u32 s88, s88, {BD}")
        a.label(ld)
        a.salu("s_sleep 4")
        a.salu("s_memrealtime s[90:91]"); a.salu("s_waitcnt lgkmcnt(0)")
        a.salu("s_sub_u32 s90, s90, s88")
        a.salu("s_cmp_lt_i32 s90, 0")
        a.salu(f"s_cbranch_scc1 {ld}")
        a.label(l2)
    def do_pack(at_end):
        lpk = a.newlabel("PK")
        a.salu("s_cmp_lt_u32 s2, 256" if not at_end else "s_cmp_ge_u32 s2, 256")
        a.salu(f"s_cbranch_scc1 {lpk}")
        RING = 48; TA, VL16, VL16B = 16, 17, 18
        a.salu("s_lshl_b32 s77, s34, 5"); a.salu("s_add_u32 s77, s77, s32")
        if not at_end: a.salu("s_sub_u32 s77, s77, 32")
        if at_end: a.barrier()
        a.salu("s_mul_i32 s29, s77, 40960")
        srd_from(a, 84, "s74", "s75", "s29", 40960)
        a.salu("s_mul_i32 s29, s33, 5242880")
        srd_from(a, 8, "s72", "s73", "s29", 5242880, WOP_OFF)
        a.valu(f"v_lshlrev_b32 v{VL16}, 4, v1", [VL16], [1])
        a.valu(f"v_add_u32 v{VL16B}, 0x1000, v{VL16}", [VL16B], [VL16])
        a.valu("v_lshl_add_u32 v10, v3, 2, v7", [10], [3, 7])
        a.valu("v_mul_u32_u24 v10, 0x500, v10", [10], [10])
        a.valu("v_lshl_add_u32 v10, v8, 3, v10", [10], [8, 10])
        a.salu("s_mul_i32 s76, s24, 320")
        a.valu(f"v_add_u32 v{TA}, s76, v10", [TA], [10])
        a.salu("s_mul_i32 s76, s24, 10240")
        for grp in range(3):
            a.salu(f"s_add_u32 m0, s76, {grp*4096}", m0=True)
            a.salu(f"s_add_u32 s29, s76, {grp*4096}")
            for jj in range(4 if grp < 2 else 2):
                a.vmem_dma(f"buffer_load_dwordx4 v{VL16}, s[84:87], s29 offen offset:{jj*1024}{KVNT} lds", [VL16], tag="pk")
        a.wait_vm('pk')
        a.barrier()
        for half in range(2):
            for nt_ in range(5):
                for u in range(2):
                    d = RING + 20*half + 4*nt_ + 2*u
                    a.ds_read(f"ds_read_b64_tr_b16 {vr(d,2)}, v{TA} offset:{u*20480+(half*5+nt_)*32}", [d, d+1], [TA], tag=('pr', half))
            a.wait_lg_all()
            a.salu(f"s_lshl_b32 s29, s24, 1"); a.salu(f"s_add_u32 s29, s29, {half}"); a.salu("s_lshl_b32 s29, s29, 7")
            a.salu("s_add_u32 s29, s29, s77"); a.salu("s_mul_i32 s29, s29, 5120")
            for nt_ in range(5):
                d = RING + 20*half + 4*nt_
                if nt_ < 4:
                    a.vmem_store(f"buffer_store_dwordx4 {vr(d,4)}, v{VL16}, s[8:11], s29 offen offset:{nt_*1024} {OST}", [VL16], range(d, d+4), tag='pks')
                else:
                    a.vmem_store(f"buffer_store_dwordx4 {vr(d,4)}, v{VL16B}, s[8:11], s29 offen {OST}", [VL16B], range(d, d+4), tag='pks')
        if not at_end:
            a.barrier()
            a.wait_vm_all()
        a.label(lpk)
        a.vmq.clear()
        a.nop(4)

    if PACKAT == 1: do_pack(False)
    issue_X(0); issue_W(0); issue_W(1); issue_X(1)
    for s_ in range(2, NW): issue_W(s_)
    if TOUCH:
        a.salu("s_lshl_b32 s29, s36, 2"); a.salu("s_add_u32 s29, s29, s24"); a.salu("s_mul_i32 s29, s29, 5120")
        a.valu("v_lshlrev_b32 v10, 7, v1", [10], [1])
        a.valu("v_cmp_gt_u32 vcc, 40, v1", [], [1], sdst=['vcc'])
        a.valu("v_mov_b32 v12, 0x7fffffff", [12], [])
        a.valu("v_cndmask_b32 v10, v12, v10, vcc", [10], [10, 12], ssrc=['vcc'])
        a.vmem_load(f"buffer_load_dword v{TMP}, v10, s[4:7], s29 offen{XNT}", [TMP], [10], tag='pf')
        a.salu("s_mul_i32 s29, s35, 80"); a.salu("s_mul_i32 s30, s24, 20"); a.salu("s_add_u32 s29, s29, s30")
        a.salu("s_lshl_b32 s29, s29, 13")
        a.valu("v_lshrrev_b32 v10, 1, v1", [10], [1])
        a.valu("v_lshlrev_b32 v10, 13, v10", [10], [10])
        a.valu("v_and_b32 v11, 1, v1", [11], [1])
        a.valu("v_lshl_add_u32 v10, v11, 7, v10", [10], [11, 10])
        a.valu("v_cndmask_b32 v10, v12, v10, vcc", [10], [10, 12], ssrc=['vcc'])
        a.vmem_load(f"buffer_load_dword v{TMP+1}, v10, s[12:15], s29 offen{WNT}", [TMP+1], [10], tag='pf')
    if not NOK0: issue_KV(0)
    a.valu("v_bfe_u32 v10, v6, 1, 3", [10], [6])
    a.valu("v_xor_b32 v10, v5, v10", [10], [5, 10])
    a.valu("v_lshlrev_b32 v10, 4, v10", [10], [10])
    a.valu("v_lshl_add_u32 v10, v6, 7, v10", [10], [6, 10])
    a.valu("v_lshl_add_u32 v10, v2, 12, v10", [10], [2, 10])
    a.valu(f"v_add_u32 v10, {XB}, v10", [10], [10])
    for sp in range(4):
        a.valu(f"v_xor_b32 v{XA+sp}, {sp*32}, v10", [XA+sp], [10])
    a.valu("v_and_b32 v10, 1, v8", [10], [8])
    a.valu("v_lshl_or_b32 v10, v9, 1, v10", [10], [9, 10])
    a.valu("v_lshrrev_b32 v11, 1, v8", [11], [8])
    for u in range(2):
        a.valu(f"v_lshl_or_b32 v12, v5, 1, {u}", [12], [5])
        a.valu("v_xor_b32 v13, v10, v12", [13], [10, 12])
        a.valu("v_lshlrev_b32 v13, 4, v13", [13], [13])
        a.valu("v_lshl_add_u32 v13, v11, 3, v13", [13], [11, 13])
        a.valu("v_lshl_add_u32 v14, v12, 2, v7", [14], [12, 7])
        a.valu("v_lshl_add_u32 v13, v14, 8, v13", [13], [14, 13])
        a.valu("v_lshl_add_u32 v13, v7, 6, v13", [13], [7, 13])
        for t in range(4):
            a.valu(f"v_xor_b32 v{WA+2*t+u}, {t*64}, v13", [WA+2*t+u], [13])
    a.valu("v_and_b32 v10, 3, v6", [10], [6])
    a.valu("v_bfe_u32 v11, v6, 2, 2", [11], [6])
    a.valu("v_lshl_or_b32 v10, v10, 2, v11", [10], [10, 11])
    a.valu("v_xor_b32 v10, v5, v10", [10], [5, 10])
    a.valu("v_lshlrev_b32 v10, 4, v10", [10], [10])
    a.valu("v_lshl_add_u32 v10, v6, 8, v10", [10], [6, 10])
    for s_ in range(8):
        a.valu(f"v_xor_b32 v{KA+s_}, {s_*32}, v10", [KA+s_], [10])
    a.valu("v_lshl_add_u32 v10, v2, 1, v9", [10], [2, 9])
    a.valu("v_lshlrev_b32 v10, 17, v10", [10], [10])
    a.valu("v_lshl_add_u32 v11, v5, 4, v4", [11], [5, 4])
    a.valu(f"v_lshl_add_u32 v{VO}, v11, 4, v10", [VO], [11, 10])
    read_X(0)
    jobs = []
    for ks in range(40):
        s_ = ks // 2; sp2 = ks % 2; c = ks // 4; sp = ks % 4
        for t in range(4):
            def rd(buf, tag, s_=s_, sp2=sp2, t=t):
                if NOMMA: return
                for u in range(2):
                    d = FB + 4*buf + 2*u
                    a.ds_read(f"ds_read_b64_tr_b16 {vr(d,2)}, v{WA+2*t+u} offset:{(s_%NW)*8192+sp2*4096}", [d, d+1], [WA+2*t+u], tag=tag)
            def mm(buf, ks=ks, t=t, c=c, sp=sp):
                if NOMMA: return
                a.mfma('32', OA+16*t, FB+4*buf, XF+16*(c % 2)+4*sp, None if ks == 0 else OA+16*t)
            jobs.append((rd, mm))
    def hook(j):
        if j % 8 == 0:
            s_ = j // 8
            a.wait_vm(('W', s_))
            a.barrier()
            if s_ >= 2 and s_ + NW - 2 < 20: issue_W(s_ + NW - 2)
            if s_ == 17 and not QONLY: issue_KV(1)
            if s_ == 19 and not QONLY:
                issue_KV(2)
                if AHEAD >= 3: issue_KV(3)
            if s_ in (0, 10): st(40 + s_ // 10)
        if j % 16 == 4 and j >= 16:
            c = j // 16
            if c + 2 < 10: issue_X(c + 2)
        if j == 4: issue_X(2)
        if j % 16 == 11:
            c = j // 16
            if c + 1 < 10: read_X(c + 1)
    a.wait_lg(('xf', 0))
    merge(a, jobs, [], 4, NB, hook=hook)
    for s_ in range(8):
        t = s_ >> 1
        for ii in range(4):
            r = OA + 16*t + 8*(s_ & 1) + 2*ii
            a.valu(f"v_cvt_pk_bf16_f32 v{QF+4*s_+ii}, v{r}, v{r+1}", [QF+4*s_+ii], [r, r+1])
    st.vt = 14
    a.salu(f"s_mov_b32 s30, 0x{f32bits(CSCALE):08x}")
    a.salu("s_lshl_b32 s29, s38, 20")
    srd_from(a, 4, "s72", "s73", "s29", 1 << 20, OWS_OFF)
    a.valu("v_lshrrev_b32 v10, 1, v8", [10], [8])
    a.valu("v_lshl_or_b32 v10, v9, 1, v10", [10], [9, 10])
    a.valu("v_and_b32 v11, 1, v8", [11], [8])
    for u in range(2):
        a.valu(f"v_or_b32 v12, {2*u}, v5", [12], [5])
        a.valu("v_xor_b32 v13, v10, v12", [13], [10, 12])
        a.valu("v_lshlrev_b32 v13, 4, v13", [13], [13])
        a.valu("v_lshl_add_u32 v13, v11, 3, v13", [13], [11, 13])
        a.valu("v_lshl_add_u32 v14, v12, 2, v7", [14], [12, 7])
        a.valu("v_lshl_add_u32 v13, v14, 8, v13", [13], [14, 13])
        a.valu("v_lshl_add_u32 v13, v7, 6, v13", [13], [7, 13])
        for t in range(4):
            a.valu(f"v_xor_b32 v{VA+2*t+u}, {t*64}, v13", [VA+2*t+u], [13])
    st(1)
    if QONLY: a.salu("s_endpgm")

    base = {'K': 0, 'V': 0}
    def rebase(which, slot):
        regs = range(KA, KA+8) if which == 'K' else range(VA, VA+8)
        need = base[which]
        if slot == 4: need = SLOT
        if slot == 0: need = 0
        if need != base[which]:
            for r in regs:
                if need > base[which]:
                    a.valu(f"v_add_u32 v{r}, {need-base[which]}, v{r}", [r], [r])
                else:
                    a.valu(f"v_subrev_u32 v{r}, {base[which]-need}, v{r}", [r], [r])
            base[which] = need
        return slot * SLOT - base[which]
    def V(text, dst, src, **kw):
        return lambda: a.valu(text, dst, src, **kw)
    def part1(j):
        SS = SB[j % 2]; T = j
        o = []
        if E("NOVALU", 0): return o
        for c_, tr in ((0, T0), (16, T1)):
            o.append(V(f"v_max3_f32 v{tr}, v{SS+c_}, v{SS+c_+1}, v{SS+c_+2}", [tr], [SS+c_, SS+c_+1, SS+c_+2]))
        for k in range(3, 15, 2):
            for c_, tr in ((0, T0), (16, T1)):
                o.append(V(f"v_max3_f32 v{tr}, v{tr}, v{SS+c_+k}, v{SS+c_+k+1}", [tr], [tr, SS+c_+k, SS+c_+k+1]))
        o.append(V(f"v_max3_f32 v{T0}, v{T0}, v{T1}, v{SS+15}", [T0], [T0, T1, SS+15]))
        o.append(V(f"v_max_f32 v{T0}, v{T0}, v{SS+31}", [T0], [T0, SS+31]))
        o.append(V(f"v_mov_b32 v{T1}, v{T0}", [T1], [T0]))
        o.append(V(f"v_permlane32_swap_b32 v{T0}, v{T1}", [T0, T1], [T0, T1], kind='permlane'))
        if T == 0:
            o.append(V(f"v_max_f32 v{M}, v{T0}, v{T1}", [M], [T0, T1]))
        else:
            o.append(V(f"v_max3_f32 v{T2}, v{T0}, v{T1}, v{M}", [T2], [T0, T1, M]))
            o.append(V(f"v_sub_f32 v{T3}, v{M}, v{T2}", [T3], [M, T2]))
            o.append(V(f"v_mul_f32 v{T3}, s30, v{T3}", [T3], [T3]))
            o.append(V(f"v_exp_f32 v{AL}, v{T3}", [AL], [T3], trans=True))
            o.append(V(f"v_mov_b32 v{M}, v{T2}", [M], [T2]))
        o.append(V(f"v_mul_f32 v{MC}, s30, v{M}", [MC], [M]))
        for i in range(32 if not E("NOFMA", 0) else 0):
            o.append(V(f"v_fma_f32 v{SS+i}, v{SS+i}, s30, -v{MC}", [SS+i], [SS+i, MC]))
        return o
    def part2(j):
        SS = SB[j % 2]; T = j
        o = []; resc = []
        if E("NOVALU", 0): return o
        if T > 0 and not E("NORESC", 0):
            for i in range(0, 64, 2):
                resc.append(V(f"v_pk_mul_f32 {vr(OA+i,2)}, {vr(OA+i,2)}, {vr(AL,2)} op_sel_hi:[1,0]", [OA+i, OA+i+1], [OA+i, OA+i+1, AL]))
        for i in range(32):
            if not E("NOEXP", 0): o.append(V(f"v_exp_f32 v{SS+i}, v{SS+i}", [SS+i], [SS+i], trans=True))
            if resc: o.append(resc.pop(0))
        for c_, tr in ((0, T0), (8, T1), (16, T2), (24, T3)):
            o.append(V(f"v_add_f32 v{tr}, v{SS+c_}, v{SS+c_+1}", [tr], [SS+c_, SS+c_+1]))
        for k in range(2, 8):
            for c_, tr in ((0, T0), (8, T1), (16, T2), (24, T3)):
                o.append(V(f"v_add_f32 v{tr}, v{tr}, v{SS+c_+k}", [tr], [tr, SS+c_+k]))
        o.append(V(f"v_add_f32 v{T0}, v{T0}, v{T1}", [T0], [T0, T1]))
        o.append(V(f"v_add_f32 v{T2}, v{T2}, v{T3}", [T2], [T2, T3]))
        if T == 0:
            o.append(V(f"v_add_f32 v{L}, v{T0}, v{T2}", [L], [T0, T2]))
        else:
            o.append(V(f"v_add_f32 v{T0}, v{T0}, v{T2}", [T0], [T0, T2]))
            o.append(V(f"v_fma_f32 v{L}, v{L}, v{AL}, v{T0}", [L], [L, AL, T0]))
        for i in range(16):
            o.append(V(f"v_cvt_pk_bf16_f32 v{SS+i}, v{SS+2*i}, v{SS+2*i+1}", [SS+i], [SS+2*i, SS+2*i+1]))
        return o

    for p in range(NP):
        kind, j = seq[p]
        slot = PERM[p % 5]
        off = rebase(kind, slot)
        a.wait_vm(('KV', p))
        a.barrier()
        if p == 0 and AHEAD >= 4: issue_KV(4)
        if p >= 1 and p + AHEAD < NP: issue_KV(p + AHEAD)
        st(3 + p)
        jobs = []
        if NOMMA: continue
        if kind == 'K':
            SS = SB[j % 2]
            for kt in range(2):
                for s_ in range(8):
                    def rd(buf, tag, kt=kt, s_=s_):
                        d = FB + 4*buf
                        a.ds_read(f"ds_read_b128 {vr(d,4)}, v{KA+s_} offset:{off+kt*8192}", range(d, d+4), [KA+s_], tag=tag)
                    def mm(buf, kt=kt, s_=s_, SS=SS):
                        a.mfma('32', SS+16*kt, FB+4*buf, QF+4*s_, None if s_ == 0 else SS+16*kt)
                    jobs.append((rd, mm))
            merge(a, jobs, part2(j - 1) if j > 0 else [], 5, NB, lead=8)
            if j == 0:
                for f in part1(0): f()
        else:
            if j == 7:
                for f in part2(7): f()
            PP = SB[j % 2]
            for jq in range(4):
                for t in range(4):
                    def rd(buf, tag, jq=jq, t=t):
                        for u in range(2):
                            d = FB + 4*buf + 2*u
                            a.ds_read(f"ds_read_b64_tr_b16 {vr(d,2)}, v{VA+2*t+u} offset:{off+jq*4096}", [d, d+1], [VA+2*t+u], tag=tag)
                    def mm(buf, jq=jq, t=t, j=j, PP=PP):
                        first = (j == 0 and jq == 0)
                        a.mfma('32', OA+16*t, FB+4*buf, PP+4*jq, None if first else OA+16*t)
                    jobs.append((rd, mm))
            merge(a, jobs, part1(j + 1) if j < 7 else [], 4, NB, lead=6)
    TMPO = SB[1]
    a.valu(f"v_mov_b32 v{T0}, v{L}", [T0], [L])
    a.valu(f"v_mov_b32 v{T1}, v{L}", [T1], [L])
    a.valu(f"v_permlane32_swap_b32 v{T0}, v{T1}", [T0, T1], [T0, T1], kind='permlane')
    a.valu(f"v_add_f32 v{T0}, v{T0}, v{T1}", [T0], [T0, T1])
    a.valu(f"v_rcp_f32 v{AL}, v{T0}", [AL], [T0], trans=True)
    a.salu("s_lshl_b32 s29, s37, 12")
    for t in range(4):
        for i in range(0, 16, 2):
            r = OA + 16*t + i
            a.valu(f"v_pk_mul_f32 {vr(r,2)}, {vr(r,2)}, {vr(AL,2)} op_sel_hi:[1,0]", [r, r+1], [r, r+1, AL])
        for piece in range(2):
            d = TMPO + 8*t + 4*piece
            for k, rr in enumerate((4*piece, 4*piece+2, 8+4*piece, 8+4*piece+2)):
                r = OA + 16*t + rr
                a.valu(f"v_cvt_pk_bf16_f32 v{d+k}, v{r}, v{r+1}", [d+k], [r, r+1])
            a.vmem_store(f"buffer_store_dwordx4 {vr(d,4)}, v{VO}, s[4:7], s29 offen offset:{t*1024+piece*512} {OST}", [VO], range(d, d+4), tag='O')
    st(35)
    if PACKAT == 2: do_pack(True)
    a.label("attn_done")
    a.salu("s_endpgm")

def gen_oproj(a):
    ACC, RING = 16, 96
    VL16, VL16B, VOF, VST = 246, 247, 248, 252
    D = 4; NK = 16
    a.label("oproj_kernel")
    a.salu("s_cmp_ge_u32 s2, 256")
    a.salu("s_cbranch_scc1 oproj_done")
    kernargs(a)
    a.salu("s_and_b32 s31, s2, 7")
    a.salu("s_lshr_b32 s32, s2, 3")
    a.salu("s_lshr_b32 s33, s31, 2")
    a.salu("s_bfe_u32 s34, s31, 0x10001")
    a.salu("s_and_b32 s35, s31, 1")
    a.salu("s_and_b32 s36, s32, 7")
    a.salu("s_lshl_b32 s34, s34, 3")
    a.salu("s_add_u32 s34, s34, s36")
    a.salu("s_lshr_b32 s36, s32, 3")
    a.salu("s_lshl_b32 s35, s35, 2")
    a.salu("s_add_u32 s35, s35, s36")
    a.salu("s_lshl_b32 s38, s33, 3"); a.salu("s_add_u32 s38, s38, s35")
    lane_consts(a)
    a.valu(f"v_lshlrev_b32 v{VL16}, 4, v1", [VL16], [1])
    a.valu(f"v_add_u32 v{VL16B}, 0x1000, v{VL16}", [VL16B], [VL16])
    for qt in range(4):
        a.valu(f"v_add_u32 v{VOF+qt}, {qt*131072}, v{VL16}", [VOF+qt], [VL16])
    a.salu("s_waitcnt lgkmcnt(0)")
    a.salu("s_mul_i32 s29, s38, 655360")
    srd_from(a, 12, "s72", "s73", "s29", 655360, WOP_OFF)
    a.salu("s_lshl_b32 s29, s33, 4"); a.salu("s_add_u32 s29, s29, s34"); a.salu("s_lshl_b32 s29, s29, 19")
    srd_from(a, 16, "s72", "s73", "s29", 524288, OWS_OFF)
    a.salu("s_lshl_b32 s26, s24, 4")
    a.salu("s_mul_i32 s27, s26, 5120")
    a.salu("s_lshl_b32 s28, s26, 10")
    def issue(k):
        slot = k % D
        a.salu(f"s_add_u32 s29, s27, {k*5120}")
        a.salu(f"s_add_u32 s30, s28, {k*1024}")
        for nt_ in range(5):
            d = RING + 36*slot + 4*nt_
            if nt_ < 4:
                a.vmem_load(f"buffer_load_dwordx4 {vr(d,4)}, v{VL16}, s[12:15], s29 offen offset:{nt_*1024}", range(d, d+4), [VL16], tag=('k', k))
            else:
                a.vmem_load(f"buffer_load_dwordx4 {vr(d,4)}, v{VL16B}, s[12:15], s29 offen", range(d, d+4), [VL16B], tag=('k', k))
        for qt in range(4):
            d = RING + 36*slot + 20 + 4*qt
            a.vmem_load(f"buffer_load_dwordx4 {vr(d,4)}, v{VOF+qt}, s[16:19], s30 offen", range(d, d+4), [VOF+qt], tag=('k', k))
    for k in range(D): issue(k)
    a.salu("s_mul_i32 s29, s34, 163840")
    a.salu("s_mul_i32 s30, s33, 1280"); a.salu("s_add_u32 s29, s29, s30")
    a.salu("s_mul_i32 s30, s35, 160"); a.salu("s_add_u32 s29, s29, s30")
    a.salu("s_sub_u32 s30, 2621440, s29")
    srd_from(a, 20, "s68", "s69", "s29", "s30")
    st = Stamper(a, 14, 15, wshift=3)
    st.setup()
    st(0)
    for k in range(NK):
        slot = k % D
        a.wait_vm(('k', k))
        for nt_ in range(5):
            for qt in range(4):
                d = ACC + 4*(nt_*4 + qt)
                a.mfma('16', d, RING + 36*slot + 4*nt_, RING + 36*slot + 20 + 4*qt, None if k == 0 else d)
        if k + D < NK: issue(k + D)
        if k in (0, 7): st(1 + k // 7)
    st(3)
    a.salu("s_mul_i32 s27, s24, 20480")
    a.valu(f"v_add_u32 v11, s27, v{VL16}", [11], [VL16])
    for tile in range(20):
        d = ACC + 4*tile
        a.ds_write(f"ds_write_b128 v11, {vr(d,4)} offset:{tile*1024}", [11] + list(range(d, d+4)))
        if len(a.lgq) >= 12: a.wait_lg_all()
    a.wait_lg_all()
    a.barrier()
    a.salu("s_lshl_b32 s29, s24, 10")
    for g in range(3):
        a.valu(f"v_add_u32 v{10+g}, s29, v{VL16}", [10+g], [VL16])
        if g: a.valu(f"v_add_u32 v{10+g}, {g*61440}, v{10+g}", [10+g], [10+g])
    a.valu("v_and_b32 v13, 3, v2", [13], [2])
    a.valu("v_lshl_add_u32 v13, v13, 4, v4", [13], [13, 4])
    a.valu("v_mul_u32_u24 v13, 0xa00, v13", [13], [13])
    a.valu("v_lshl_add_u32 v13, v3, 3, v13", [13], [3, 13])
    a.valu("v_lshrrev_b32 v14, 2, v2", [14], [2])
    a.valu(f"v_lshl_add_u32 v{VST}, v14, 5, v13", [VST], [14, 13])
    lskip = a.newlabel("RS")
    for i in range(3):
        if i == 2:
            a.salu("s_cmp_ge_u32 s24, 4")
            a.salu(f"s_cbranch_scc1 {lskip}")
        for src in range(8):
            d = RING + 32*i + 4*src
            ar = 10 + src // 3
            a.ds_read(f"ds_read_b128 {vr(d,4)}, v{ar} offset:{(src%3)*20480 + i*8192}", range(d, d+4), [ar], tag=('R', i))
        a.wait_lg_all()
        d = RING + 32*i
        for step in (4, 2, 1):
            for q in range(step):
                for k in range(4):
                    x, y = d + 4*q + k, d + 4*(q+step) + k
                    a.valu(f"v_add_f32 v{x}, v{x}, v{y}", [x], [x, y])
        a.valu(f"v_cvt_pk_bf16_f32 v{d+4}, v{d}, v{d+1}", [d+4], [d, d+1])
        a.valu(f"v_cvt_pk_bf16_f32 v{d+5}, v{d+2}, v{d+3}", [d+5], [d+2, d+3])
        a.vmem_store(f"buffer_store_dwordx2 {vr(d+4,2)}, v{VST}, s[20:23], 0 offen offset:{i*64}", [VST], [d+4, d+5], tag='st')
    a.label(lskip)
    st(4)
    a.label("oproj_done")
    a.salu("s_endpgm")

def kd(name, vgpr):
    return f""".p2align 6
.amdhsa_kernel {name}
  .amdhsa_next_free_vgpr {vgpr}
  .amdhsa_next_free_sgpr 102
  .amdhsa_accum_offset {vgpr}
  .amdhsa_group_segment_fixed_size 0
  .amdhsa_kernarg_size 104
  .amdhsa_user_sgpr_count 2
  .amdhsa_user_sgpr_kernarg_segment_ptr 1
  .amdhsa_system_sgpr_workgroup_id_x 1
.end_amdhsa_kernel
"""

def main(out):
    hdr = """; Generated by gen/gen_v6.py (hand-written generator).
; @launch kernel=attn_kernel grid=(512,1,1) block=(256,1,1) lds=81920
; @launch kernel=oproj_kernel grid=(256,1,1) block=(512,1,1) lds=163840
.amdgcn_target "amdgcn-amd-amdhsa--gfx950"
.text
"""
    body = ""
    for name, g in (("attn_kernel", gen_attn), ("oproj_kernel", gen_oproj)):
        a = Asm()
        g(a)
        body += f".globl {name}\n.p2align 8\n.type {name},@function\n" + a.text()
    tail = '.section .rodata,"a"\n' + kd("attn_kernel", 232) + kd("oproj_kernel", 256)
    open(out, "w").write(hdr + body + tail)

if __name__ == "__main__":
    main(sys.argv[1] if len(sys.argv) > 1 else f"cdna_kernels/{NAME}.s")
```

```python
import sys, struct, os, math
sys.path.insert(0, 'gen')
from asmlib import *

NAME = "concat_heads__gqa_block_cached__mha_block_cached__near_ridge"
CSCALE = (128 ** -0.5) * math.log2(math.e)
def f32bits(x): return struct.unpack('<I', struct.pack('<f', x))[0]
E = lambda k, d: int(os.environ.get(k, str(d)))
STAMP = E("STAMP", 0); TOUCH = E("TOUCH", 0); AHEAD = E("AHEAD", 4); PRIO = E("PRIO", 1)
WNT = " nt" if E("WNT", 0) else ""
PACKAT = 0 if E("NOPACK", 0) else E("PACKAT", 2)
KVNT = " nt" if E("KVNT", 0) else ""
XNT = " nt" if E("XNT", 0) else ""
QONLY = E("QONLY", 0); NOPACK = E("NOPACK", 0); NOK0 = E("NOK0", 0); NOMMA = E("NOMMA", 0); NODMA = E("NODMA", 0); NOX = E("NOX", 0); NOW = E("NOW", 0)
OST = os.environ.get("OST", "sc1")
OWS_OFF, WOP_OFF, STAMP_OFF = 0, 32 << 20, 64 << 20

def srd_from(a, d, base_lo, base_hi, off_sreg, size, const_off=0):
    a.salu(f"s_add_u32 s{d}, {base_lo}, {off_sreg}")
    a.salu(f"s_addc_u32 s{d+1}, {base_hi}, 0")
    if const_off:
        a.salu(f"s_add_u32 s{d}, s{d}, {const_off}")
        a.salu(f"s_addc_u32 s{d+1}, s{d+1}, 0")
    a.salu(f"s_and_b32 s{d+1}, s{d+1}, 0xffff")
    a.salu(f"s_mov_b32 s{d+2}, {size}")
    a.salu(f"s_mov_b32 s{d+3}, 0x00020000")

class Stamper:
    def __init__(self, a, vtmp, vzero, wshift=2):
        self.a, self.vt, self.vz, self.ws = a, vtmp, vzero, wshift
    def setup(self):
        a = self.a
        if not STAMP: return
        a.salu("s_mov_b32 s78, 0")
        srd_from(a, 80, "s72", "s73", "s78", 1 << 20, STAMP_OFF)
        a.salu(f"s_lshl_b32 s78, s2, {self.ws}"); a.salu("s_add_u32 s78, s78, s24"); a.salu("s_lshl_b32 s78, s78, 8")
    def __call__(self, idx):
        a = self.a
        if not STAMP: return
        a.wait_lg_all()
        a.salu("s_memrealtime s[90:91]")
        a.salu("s_waitcnt lgkmcnt(0)")
        a.valu(f"v_mov_b32 v{self.vt}, s90", [self.vt], [])
        a.vmem_store(f"buffer_store_dword v{self.vt}, v{self.vz}, s[80:83], s78 offen offset:{idx*4}", [self.vz], [self.vt], tag='stamp')

def merge(a, jobs, valus, PD, NB, lead=0, hook=None):
    n = len(jobs); vi = 0
    for i in range(-PD, n):
        if i + PD < n:
            if hook: hook(i + PD)
            jobs[i + PD][0]((i + PD) % NB, ('job', i + PD))
        if i == -1:
            for _ in range(min(lead, len(valus) - vi)):
                valus[vi](); vi += 1
        if i >= 0:
            a.wait_lg(('job', i))
            jobs[i][1](i % NB)
            rem = len(valus) - vi
            k = -(-rem // (n - i))
            for _ in range(k):
                valus[vi](); vi += 1
    while vi < len(valus):
        valus[vi](); vi += 1

def kernargs(a):
    a.salu("s_load_dwordx16 s[48:63], s[0:1], 0")
    a.salu("s_load_dwordx8 s[64:71], s[0:1], 64")
    a.salu("s_load_dwordx2 s[72:73], s[0:1], 96")

def lane_consts(a):
    a.valu("v_and_b32 v1, 63, v0", [1], [0])
    a.valu("v_lshrrev_b32 v2, 6, v0", [2], [0])
    a.valu("v_readfirstlane_b32 s24, v2", [], [2], sdst=['s24'], kind='readlane')
    a.valu("v_lshrrev_b32 v3, 4, v1", [3], [1])
    a.valu("v_and_b32 v4, 15, v1", [4], [1])
    a.valu("v_lshrrev_b32 v5, 5, v1", [5], [1])
    a.valu("v_and_b32 v6, 31, v1", [6], [1])
    a.valu("v_bfe_u32 v7, v1, 2, 2", [7], [1])
    a.valu("v_and_b32 v8, 3, v1", [8], [1])
    a.valu("v_and_b32 v9, 1, v3", [9], [3])
    a.valu("v_mov_b32 v15, 0", [15], [])

def gen_attn(a):
    QF = 16
    OA, SB, FB = 48, [112, 144], 176
    KA, VA, VKV = 200, 208, 216
    M, L, AL, MC, T0, T1, T2, T3 = 220, 221, 222, 224, 225, 226, 227, 228
    VO = 229
    NB = 6
    SLOT = 16384
    NW = E("NW", 4)
    XB = NW * 8192
    a.label("attn_kernel")
    a.salu("s_cmp_ge_u32 s2, 512")
    a.salu("s_cbranch_scc1 attn_done")
    kernargs(a)
    a.salu("s_and_b32 s31, s2, 7")
    if E("MAP", 1):
        a.salu("s_bfe_u32 s32, s2, 0x50003")
        a.salu("s_lshr_b32 s33, s2, 8")
        a.salu("s_and_b32 s35, s32, 7")
        a.salu("s_lshr_b32 s36, s32, 3")
        a.salu("s_lshl_b32 s37, s36, 3")
        a.salu("s_add_u32 s37, s37, s31")
        a.salu("s_and_b32 s34, s31, 3")
    else:
        a.salu("s_lshr_b32 s32, s2, 3")
        a.salu("s_lshr_b32 s33, s31, 2")
        a.salu("s_and_b32 s34, s31, 3")
        a.salu("s_and_b32 s35, s32, 7")
        a.salu("s_lshr_b32 s36, s32, 3")
        a.salu("s_lshl_b32 s37, s36, 2")
        a.salu("s_add_u32 s37, s37, s34")
    a.salu("s_lshl_b32 s38, s33, 3")
    a.salu("s_add_u32 s38, s38, s35")
    a.salu("s_lshr_b32 s39, s31, 2")
    lane_consts(a)
    if PRIO:
        lp = a.newlabel("PR")
        a.salu("s_cmp_ge_u32 s2, 256")
        a.salu(f"s_cbranch_scc1 {lp}")
        a.salu("s_setprio 2")
        a.label(lp)
    for jj in range(4):
        a.valu(f"v_lshl_or_b32 v10, v3, 2, {jj}", [10], [3])
        a.valu("v_xor_b32 v10, v4, v10", [10], [4, 10])
        a.valu("v_lshlrev_b32 v10, 4, v10", [10], [10])
        a.valu(f"v_lshl_add_u32 v{VKV+jj}, v3, 8, v10", [VKV+jj], [3, 10])
    XF, WA, VW, VX, XA, TMP = SB[0], VA, SB[1], SB[1]+2, SB[1]+6, SB[1]+10
    for jj in range(2):
        a.valu(f"v_lshl_or_b32 v10, v2, 1, {jj}", [10], [2])
        a.valu("v_and_b32 v10, 3, v10", [10], [10])
        a.valu("v_lshl_or_b32 v10, v3, 2, v10", [10], [3, 10])
        a.valu("v_xor_b32 v10, v4, v10", [10], [4, 10])
        a.valu("v_lshlrev_b32 v10, 4, v10", [10], [10])
        a.valu("v_lshl_add_u32 v10, v3, 13, v10", [10], [3, 10])
        a.valu(f"v_add_u32 v{VW+jj}, {jj*(4*8192-1024)}, v10", [VW+jj], [10])
    a.valu("v_lshrrev_b32 v11, 3, v1", [11], [1])
    a.valu("v_mul_u32_u24 v11, 0x500, v11", [11], [11])
    a.valu("v_and_b32 v12, 7, v1", [12], [1])
    for jj in range(4):
        a.valu(f"v_add_u32 v10, {(4*jj) & 7}, v3", [10], [3])
        a.valu("v_xor_b32 v10, v12, v10", [10], [12, 10])
        a.valu("v_lshl_add_u32 v10, v10, 4, v11", [10], [10, 11])
        a.valu(f"v_add_u32 v{VX+jj}, {jj*(8*1280-1024)}, v10", [VX+jj], [10])
    a.salu("s_waitcnt lgkmcnt(0)")
    a.salu("s_cmp_eq_u32 s33, 1")
    a.salu("s_cselect_b64 s[40:41], s[58:59], s[48:49]")
    a.salu("s_cselect_b64 s[42:43], s[60:61], s[50:51]")
    a.salu("s_cselect_b64 s[44:45], s[62:63], s[52:53]")
    a.salu("s_cselect_b64 s[46:47], s[64:65], s[54:55]")
    a.salu("s_cmp_eq_u32 s39, 1")
    a.salu("s_cselect_b64 s[74:75], s[66:67], s[56:57]")
    a.salu("s_mul_i32 s29, s35, 163840")
    srd_from(a, 4, "s40", "s41", "s29", 163840)
    a.salu("s_lshl_b32 s93, s37, 8")
    a.salu("s_sub_u32 s30, 5242880, s93")
    srd_from(a, 12, "s46", "s47", "s93", "s30")
    a.salu("s_lshl_b32 s29, s35, 5"); a.salu("s_add_u32 s29, s29, s37"); a.salu("s_lshl_b32 s29, s29, 17")
    srd_from(a, 20, "s42", "s43", "s29", 131072)
    srd_from(a, 96, "s44", "s45", "s29", 131072)
    a.salu("s_lshl_b32 s26, s24, 11")
    a.salu("s_lshl_b32 s27, s24, 16")
    a.salu("s_lshl_b32 s92, s24, 12")
    a.salu(f"s_add_u32 s28, s92, {XB}")
    a.salu("s_mul_i32 s25, s24, 40960")
    st = Stamper(a, QF + 31, 15)
    st.setup()
    st(0)

    seq = [('K', 0)]
    for i in range(7): seq += [('K', i + 1), ('V', i)]
    seq += [('V', 7)]
    NP = len(seq)
    PERM = [4, 2, 0, 3, 1]
    def issue_KV(p):
        if NODMA: return
        kind, j = seq[p]
        slot = PERM[p % 5]
        srd = "s[20:23]" if kind == 'K' else "s[96:99]"
        a.salu(f"s_add_u32 m0, s92, {slot*SLOT}", m0=True)
        a.salu(f"s_add_u32 s29, s92, {j*16384}")
        for jj in range(4):
            a.vmem_dma(f"buffer_load_dwordx4 v{VKV+jj}, {srd}, s29 offen offset:{jj*1024}{KVNT} lds", [VKV+jj], tag=('KV', p))
    def issue_W(s_):
        if NODMA or NOW: return
        buf = s_ % NW
        a.salu(f"s_add_u32 m0, s26, {buf*8192}", m0=True)
        a.salu(f"s_add_u32 s29, s27, {s_*32*8192}")
        for jj in range(2):
            a.vmem_dma(f"buffer_load_dwordx4 v{VW+jj}, s[12:15], s29 offen offset:{jj*1024}{WNT} lds", [VW+jj], tag=('W', s_))
    def issue_X(c):
        if NODMA or NOX: return
        a.salu(f"s_add_u32 m0, s28, {(c%2)*16384}", m0=True)
        a.salu(f"s_add_u32 s29, s25, {c*128}")
        for jj in range(4):
            a.vmem_dma(f"buffer_load_dwordx4 v{VX+jj}, s[4:7], s29 offen offset:{jj*1024}{XNT} lds", [VX+jj], tag=('X', c))
    def read_X(c):
        if not E("NOWAIT", 0): a.wait_vm(('X', c))
        if NOMMA: return
        for sp in range(4):
            d = XF + 16*(c % 2) + 4*sp
            a.ds_read(f"ds_read_b128 {vr(d,4)}, v{XA+sp} offset:{(c%2)*16384}", range(d, d+4), [XA+sp], tag=('xf', c))

    BD = E("BDELAY", 0)
    if BD:
        ld, l2 = a.newlabel("BD"), a.newlabel("BE")
        a.salu("s_cmp_lt_u32 s2, 256")
        a.salu(f"s_cbranch_scc1 {l2}")
        a.salu("s_memrealtime s[88:89]"); a.salu("s_waitcnt lgkmcnt(0)")
        a.salu(f"s_add_u32 s88, s88, {BD}")
        a.label(ld)
        a.salu("s_sleep 4")
        a.salu("s_memrealtime s[90:91]"); a.salu("s_waitcnt lgkmcnt(0)")
        a.salu("s_sub_u32 s90, s90, s88")
        a.salu("s_cmp_lt_i32 s90, 0")
        a.salu(f"s_cbranch_scc1 {ld}")
        a.label(l2)
    def do_pack(at_end):
        lpk = a.newlabel("PK")
        a.salu("s_cmp_lt_u32 s2, 256" if not at_end else "s_cmp_ge_u32 s2, 256")
        a.salu(f"s_cbranch_scc1 {lpk}")
        RING = 48; TA, VL16, VL16B = 16, 17, 18
        a.salu("s_lshl_b32 s77, s34, 5"); a.salu("s_add_u32 s77, s77, s32")
        if not at_end: a.salu("s_sub_u32 s77, s77, 32")
        if at_end: a.barrier()
        a.salu("s_mul_i32 s29, s77, 40960")
        srd_from(a, 84, "s74", "s75", "s29", 40960)
        a.salu("s_mul_i32 s29, s39, 5242880")
        srd_from(a, 8, "s72", "s73", "s29", 5242880, WOP_OFF)
        a.valu(f"v_lshlrev_b32 v{VL16}, 4, v1", [VL16], [1])
        a.valu(f"v_add_u32 v{VL16B}, 0x1000, v{VL16}", [VL16B], [VL16])
        a.valu("v_lshl_add_u32 v10, v3, 2, v7", [10], [3, 7])
        a.valu("v_mul_u32_u24 v10, 0x500, v10", [10], [10])
        a.valu("v_lshl_add_u32 v10, v8, 3, v10", [10], [8, 10])
        a.salu("s_mul_i32 s76, s24, 320")
        a.valu(f"v_add_u32 v{TA}, s76, v10", [TA], [10])
        a.salu("s_mul_i32 s76, s24, 10240")
        for grp in range(3):
            a.salu(f"s_add_u32 m0, s76, {grp*4096}", m0=True)
            a.salu(f"s_add_u32 s29, s76, {grp*4096}")
            for jj in range(4 if grp < 2 else 2):
                a.vmem_dma(f"buffer_load_dwordx4 v{VL16}, s[84:87], s29 offen offset:{jj*1024}{KVNT} lds", [VL16], tag="pk")
        a.wait_vm('pk')
        a.barrier()
        for half in range(2):
            for nt_ in range(5):
                for u in range(2):
                    d = RING + 20*half + 4*nt_ + 2*u
                    a.ds_read(f"ds_read_b64_tr_b16 {vr(d,2)}, v{TA} offset:{u*20480+(half*5+nt_)*32}", [d, d+1], [TA], tag=('pr', half))
            a.wait_lg_all()
            a.salu(f"s_lshl_b32 s29, s24, 1"); a.salu(f"s_add_u32 s29, s29, {half}"); a.salu("s_lshl_b32 s29, s29, 7")
            a.salu("s_add_u32 s29, s29, s77"); a.salu("s_mul_i32 s29, s29, 5120")
            for nt_ in range(5):
                d = RING + 20*half + 4*nt_
                if nt_ < 4:
                    a.vmem_store(f"buffer_store_dwordx4 {vr(d,4)}, v{VL16}, s[8:11], s29 offen offset:{nt_*1024} {OST}", [VL16], range(d, d+4), tag='pks')
                else:
                    a.vmem_store(f"buffer_store_dwordx4 {vr(d,4)}, v{VL16B}, s[8:11], s29 offen {OST}", [VL16B], range(d, d+4), tag='pks')
        if not at_end:
            a.barrier()
            a.wait_vm_all()
        a.label(lpk)
        a.vmq.clear()
        a.nop(4)

    if PACKAT == 1: do_pack(False)
    issue_X(0); issue_W(0); issue_W(1); issue_X(1)
    for s_ in range(2, NW): issue_W(s_)
    if TOUCH:
        a.salu("s_lshl_b32 s29, s36, 2"); a.salu("s_add_u32 s29, s29, s24"); a.salu("s_mul_i32 s29, s29, 5120")
        a.valu("v_lshlrev_b32 v10, 7, v1", [10], [1])
        a.valu("v_cmp_gt_u32 vcc, 40, v1", [], [1], sdst=['vcc'])
        a.valu("v_mov_b32 v12, 0x7fffffff", [12], [])
        a.valu("v_cndmask_b32 v10, v12, v10, vcc", [10], [10, 12], ssrc=['vcc'])
        a.vmem_load(f"buffer_load_dword v{TMP}, v10, s[4:7], s29 offen{XNT}", [TMP], [10], tag='pf')
        a.salu("s_mul_i32 s29, s35, 80"); a.salu("s_mul_i32 s30, s24, 20"); a.salu("s_add_u32 s29, s29, s30")
        a.salu("s_lshl_b32 s29, s29, 13")
        a.valu("v_lshrrev_b32 v10, 1, v1", [10], [1])
        a.valu("v_lshlrev_b32 v10, 13, v10", [10], [10])
        a.valu("v_and_b32 v11, 1, v1", [11], [1])
        a.valu("v_lshl_add_u32 v10, v11, 7, v10", [10], [11, 10])
        a.valu("v_cndmask_b32 v10, v12, v10, vcc", [10], [10, 12], ssrc=['vcc'])
        a.vmem_load(f"buffer_load_dword v{TMP+1}, v10, s[12:15], s29 offen{WNT}", [TMP+1], [10], tag='pf')
    if not NOK0: issue_KV(0)
    a.valu("v_bfe_u32 v10, v6, 1, 3", [10], [6])
    a.valu("v_xor_b32 v10, v5, v10", [10], [5, 10])
    a.valu("v_lshlrev_b32 v10, 4, v10", [10], [10])
    a.valu("v_lshl_add_u32 v10, v6, 7, v10", [10], [6, 10])
    a.valu("v_lshl_add_u32 v10, v2, 12, v10", [10], [2, 10])
    a.valu(f"v_add_u32 v10, {XB}, v10", [10], [10])
    for sp in range(4):
        a.valu(f"v_xor_b32 v{XA+sp}, {sp*32}, v10", [XA+sp], [10])
    a.valu("v_and_b32 v10, 1, v8", [10], [8])
    a.valu("v_lshl_or_b32 v10, v9, 1, v10", [10], [9, 10])
    a.valu("v_lshrrev_b32 v11, 1, v8", [11], [8])
    for u in range(2):
        a.valu(f"v_lshl_or_b32 v12, v5, 1, {u}", [12], [5])
        a.valu("v_xor_b32 v13, v10, v12", [13], [10, 12])
        a.valu("v_lshlrev_b32 v13, 4, v13", [13], [13])
        a.valu("v_lshl_add_u32 v13, v11, 3, v13", [13], [11, 13])
        a.valu("v_lshl_add_u32 v14, v12, 2, v7", [14], [12, 7])
        a.valu("v_lshl_add_u32 v13, v14, 8, v13", [13], [14, 13])
        a.valu("v_lshl_add_u32 v13, v7, 6, v13", [13], [7, 13])
        for t in range(4):
            a.valu(f"v_xor_b32 v{WA+2*t+u}, {t*64}, v13", [WA+2*t+u], [13])
    a.valu("v_and_b32 v10, 3, v6", [10], [6])
    a.valu("v_bfe_u32 v11, v6, 2, 2", [11], [6])
    a.valu("v_lshl_or_b32 v10, v10, 2, v11", [10], [10, 11])
    a.valu("v_xor_b32 v10, v5, v10", [10], [5, 10])
    a.valu("v_lshlrev_b32 v10, 4, v10", [10], [10])
    a.valu("v_lshl_add_u32 v10, v6, 8, v10", [10], [6, 10])
    for s_ in range(8):
        a.valu(f"v_xor_b32 v{KA+s_}, {s_*32}, v10", [KA+s_], [10])
    a.valu("v_lshl_add_u32 v10, v2, 1, v9", [10], [2, 9])
    a.valu("v_lshlrev_b32 v10, 17, v10", [10], [10])
    a.valu("v_lshl_add_u32 v11, v5, 4, v4", [11], [5, 4])
    a.valu(f"v_lshl_add_u32 v{VO}, v11, 4, v10", [VO], [11, 10])
    read_X(0)
    jobs = []
    for ks in range(40):
        s_ = ks // 2; sp2 = ks % 2; c = ks // 4; sp = ks % 4
        for t in range(4):
            def rd(buf, tag, s_=s_, sp2=sp2, t=t):
                if NOMMA: return
                for u in range(2):
                    d = FB + 4*buf + 2*u
                    a.ds_read(f"ds_read_b64_tr_b16 {vr(d,2)}, v{WA+2*t+u} offset:{(s_%NW)*8192+sp2*4096}", [d, d+1], [WA+2*t+u], tag=tag)
            def mm(buf, ks=ks, t=t, c=c, sp=sp):
                if NOMMA: return
                a.mfma('32', OA+16*t, FB+4*buf, XF+16*(c % 2)+4*sp, None if ks == 0 else OA+16*t)
            jobs.append((rd, mm))
    def hook(j):
        if j % 8 == 0:
            s_ = j // 8
            if not E("NOWAIT", 0): a.wait_vm(('W', s_))
            if not E("NOBAR", 0): a.barrier()
            if s_ >= 2 and s_ + NW - 2 < 20: issue_W(s_ + NW - 2)
            if s_ == 17 and not QONLY: issue_KV(1)
            if s_ == 19 and not QONLY:
                issue_KV(2)
                if AHEAD >= 3: issue_KV(3)
            if s_ in (0, 10): st(40 + s_ // 10)
        if j % 16 == 4 and j >= 16:
            c = j // 16
            if c + 2 < 10: issue_X(c + 2)
        if j == 4: issue_X(2)
        if j % 16 == 11:
            c = j // 16
            if c + 1 < 10: read_X(c + 1)
    a.wait_lg(('xf', 0))
    merge(a, jobs, [], 4, NB, hook=hook)
    for s_ in range(8):
        t = s_ >> 1
        for ii in range(4):
            r = OA + 16*t + 8*(s_ & 1) + 2*ii
            a.valu(f"v_cvt_pk_bf16_f32 v{QF+4*s_+ii}, v{r}, v{r+1}", [QF+4*s_+ii], [r, r+1])
    st.vt = 14
    a.salu(f"s_mov_b32 s30, 0x{f32bits(CSCALE):08x}")
    a.salu("s_lshl_b32 s29, s38, 20")
    srd_from(a, 4, "s72", "s73", "s29", 1 << 20, OWS_OFF)
    a.valu("v_lshrrev_b32 v10, 1, v8", [10], [8])
    a.valu("v_lshl_or_b32 v10, v9, 1, v10", [10], [9, 10])
    a.valu("v_and_b32 v11, 1, v8", [11], [8])
    for u in range(2):
        a.valu(f"v_or_b32 v12, {2*u}, v5", [12], [5])
        a.valu("v_xor_b32 v13, v10, v12", [13], [10, 12])
        a.valu("v_lshlrev_b32 v13, 4, v13", [13], [13])
        a.valu("v_lshl_add_u32 v13, v11, 3, v13", [13], [11, 13])
        a.valu("v_lshl_add_u32 v14, v12, 2, v7", [14], [12, 7])
        a.valu("v_lshl_add_u32 v13, v14, 8, v13", [13], [14, 13])
        a.valu("v_lshl_add_u32 v13, v7, 6, v13", [13], [7, 13])
        for t in range(4):
            a.valu(f"v_xor_b32 v{VA+2*t+u}, {t*64}, v13", [VA+2*t+u], [13])
    st(1)
    if QONLY: a.salu("s_endpgm")

    base = {'K': 0, 'V': 0}
    def rebase(which, slot):
        regs = range(KA, KA+8) if which == 'K' else range(VA, VA+8)
        need = base[which]
        if slot == 4: need = SLOT
        if slot == 0: need = 0
        if need != base[which]:
            for r in regs:
                if need > base[which]:
                    a.valu(f"v_add_u32 v{r}, {need-base[which]}, v{r}", [r], [r])
                else:
                    a.valu(f"v_subrev_u32 v{r}, {base[which]-need}, v{r}", [r], [r])
            base[which] = need
        return slot * SLOT - base[which]
    def V(text, dst, src, **kw):
        return lambda: a.valu(text, dst, src, **kw)
    def part1(j):
        SS = SB[j % 2]; T = j
        o = []
        if E("NOVALU", 0): return o
        for c_, tr in ((0, T0), (16, T1)):
            o.append(V(f"v_max3_f32 v{tr}, v{SS+c_}, v{SS+c_+1}, v{SS+c_+2}", [tr], [SS+c_, SS+c_+1, SS+c_+2]))
        for k in range(3, 15, 2):
            for c_, tr in ((0, T0), (16, T1)):
                o.append(V(f"v_max3_f32 v{tr}, v{tr}, v{SS+c_+k}, v{SS+c_+k+1}", [tr], [tr, SS+c_+k, SS+c_+k+1]))
        o.append(V(f"v_max3_f32 v{T0}, v{T0}, v{T1}, v{SS+15}", [T0], [T0, T1, SS+15]))
        o.append(V(f"v_max_f32 v{T0}, v{T0}, v{SS+31}", [T0], [T0, SS+31]))
        o.append(V(f"v_mov_b32 v{T1}, v{T0}", [T1], [T0]))
        o.append(V(f"v_permlane32_swap_b32 v{T0}, v{T1}", [T0, T1], [T0, T1], kind='permlane'))
        if T == 0:
            o.append(V(f"v_max_f32 v{M}, v{T0}, v{T1}", [M], [T0, T1]))
        else:
            o.append(V(f"v_max3_f32 v{T2}, v{T0}, v{T1}, v{M}", [T2], [T0, T1, M]))
            o.append(V(f"v_sub_f32 v{T3}, v{M}, v{T2}", [T3], [M, T2]))
            o.append(V(f"v_mul_f32 v{T3}, s30, v{T3}", [T3], [T3]))
            o.append(V(f"v_exp_f32 v{AL}, v{T3}", [AL], [T3], trans=True))
            o.append(V(f"v_mov_b32 v{M}, v{T2}", [M], [T2]))
        o.append(V(f"v_mul_f32 v{MC}, s30, v{M}", [MC], [M]))
        for i in range(32 if not E("NOFMA", 0) else 0):
            o.append(V(f"v_fma_f32 v{SS+i}, v{SS+i}, s30, -v{MC}", [SS+i], [SS+i, MC]))
        return o
    def part2(j):
        SS = SB[j % 2]; T = j
        o = []; resc = []
        if E("NOVALU", 0): return o
        if T > 0 and not E("NORESC", 0):
            for i in range(0, 64, 2):
                resc.append(V(f"v_pk_mul_f32 {vr(OA+i,2)}, {vr(OA+i,2)}, {vr(AL,2)} op_sel_hi:[1,0]", [OA+i, OA+i+1], [OA+i, OA+i+1, AL]))
        for i in range(32):
            if not E("NOEXP", 0): o.append(V(f"v_exp_f32 v{SS+i}, v{SS+i}", [SS+i], [SS+i], trans=True))
            if resc: o.append(resc.pop(0))
        for c_, tr in ((0, T0), (8, T1), (16, T2), (24, T3)):
            o.append(V(f"v_add_f32 v{tr}, v{SS+c_}, v{SS+c_+1}", [tr], [SS+c_, SS+c_+1]))
        for k in range(2, 8):
            for c_, tr in ((0, T0), (8, T1), (16, T2), (24, T3)):
                o.append(V(f"v_add_f32 v{tr}, v{tr}, v{SS+c_+k}", [tr], [tr, SS+c_+k]))
        o.append(V(f"v_add_f32 v{T0}, v{T0}, v{T1}", [T0], [T0, T1]))
        o.append(V(f"v_add_f32 v{T2}, v{T2}, v{T3}", [T2], [T2, T3]))
        if T == 0:
            o.append(V(f"v_add_f32 v{L}, v{T0}, v{T2}", [L], [T0, T2]))
        else:
            o.append(V(f"v_add_f32 v{T0}, v{T0}, v{T2}", [T0], [T0, T2]))
            o.append(V(f"v_fma_f32 v{L}, v{L}, v{AL}, v{T0}", [L], [L, AL, T0]))
        for i in range(16):
            o.append(V(f"v_cvt_pk_bf16_f32 v{SS+i}, v{SS+2*i}, v{SS+2*i+1}", [SS+i], [SS+2*i, SS+2*i+1]))
        return o

    for p in range(NP):
        kind, j = seq[p]
        slot = PERM[p % 5]
        off = rebase(kind, slot)
        a.wait_vm(('KV', p))
        a.barrier()
        if p == 0 and AHEAD >= 4: issue_KV(4)
        if p >= 1 and p + AHEAD < NP: issue_KV(p + AHEAD)
        st(3 + p)
        jobs = []
        if NOMMA: continue
        if kind == 'K':
            SS = SB[j % 2]
            for kt in range(2):
                for s_ in range(8):
                    def rd(buf, tag, kt=kt, s_=s_):
                        d = FB + 4*buf
                        a.ds_read(f"ds_read_b128 {vr(d,4)}, v{KA+s_} offset:{off+kt*8192}", range(d, d+4), [KA+s_], tag=tag)
                    def mm(buf, kt=kt, s_=s_, SS=SS):
                        a.mfma('32', SS+16*kt, FB+4*buf, QF+4*s_, None if s_ == 0 else SS+16*kt)
                    jobs.append((rd, mm))
            merge(a, jobs, part2(j - 1) if j > 0 else [], 5, NB, lead=8)
            if j == 0:
                for f in part1(0): f()
        else:
            if j == 7:
                for f in part2(7): f()
            PP = SB[j % 2]
            for jq in range(4):
                for t in range(4):
                    def rd(buf, tag, jq=jq, t=t):
                        for u in range(2):
                            d = FB + 4*buf + 2*u
                            a.ds_read(f"ds_read_b64_tr_b16 {vr(d,2)}, v{VA+2*t+u} offset:{off+jq*4096}", [d, d+1], [VA+2*t+u], tag=tag)
                    def mm(buf, jq=jq, t=t, j=j, PP=PP):
                        first = (j == 0 and jq == 0)
                        a.mfma('32', OA+16*t, FB+4*buf, PP+4*jq, None if first else OA+16*t)
                    jobs.append((rd, mm))
            merge(a, jobs, part1(j + 1) if j < 7 else [], 4, NB, lead=6)
    TMPO = SB[1]
    a.valu(f"v_mov_b32 v{T0}, v{L}", [T0], [L])
    a.valu(f"v_mov_b32 v{T1}, v{L}", [T1], [L])
    a.valu(f"v_permlane32_swap_b32 v{T0}, v{T1}", [T0, T1], [T0, T1], kind='permlane')
    a.valu(f"v_add_f32 v{T0}, v{T0}, v{T1}", [T0], [T0, T1])
    a.valu(f"v_rcp_f32 v{AL}, v{T0}", [AL], [T0], trans=True)
    a.salu("s_lshl_b32 s29, s37, 12")
    for t in range(4):
        for i in range(0, 16, 2):
            r = OA + 16*t + i
            a.valu(f"v_pk_mul_f32 {vr(r,2)}, {vr(r,2)}, {vr(AL,2)} op_sel_hi:[1,0]", [r, r+1], [r, r+1, AL])
        for piece in range(2):
            d = TMPO + 8*t + 4*piece
            for k, rr in enumerate((4*piece, 4*piece+2, 8+4*piece, 8+4*piece+2)):
                r = OA + 16*t + rr
                a.valu(f"v_cvt_pk_bf16_f32 v{d+k}, v{r}, v{r+1}", [d+k], [r, r+1])
            a.vmem_store(f"buffer_store_dwordx4 {vr(d,4)}, v{VO}, s[4:7], s29 offen offset:{t*1024+piece*512} {OST}", [VO], range(d, d+4), tag='O')
    st(35)
    if PACKAT == 2: do_pack(True)
    a.label("attn_done")
    a.salu("s_endpgm")

def gen_oproj(a):
    ACC, RING = 16, 96
    VL16, VL16B, VOF, VST = 246, 247, 248, 252
    D = 4; NK = 16
    a.label("oproj_kernel")
    a.salu("s_cmp_ge_u32 s2, 256")
    a.salu("s_cbranch_scc1 oproj_done")
    kernargs(a)
    a.salu("s_and_b32 s31, s2, 7")
    a.salu("s_lshr_b32 s32, s2, 3")
    a.salu("s_lshr_b32 s33, s31, 2")
    a.salu("s_bfe_u32 s34, s31, 0x10001")
    a.salu("s_and_b32 s35, s31, 1")
    a.salu("s_and_b32 s36, s32, 7")
    a.salu("s_lshl_b32 s34, s34, 3")
    a.salu("s_add_u32 s34, s34, s36")
    a.salu("s_lshr_b32 s36, s32, 3")
    a.salu("s_lshl_b32 s35, s35, 2")
    a.salu("s_add_u32 s35, s35, s36")
    a.salu("s_lshl_b32 s38, s33, 3"); a.salu("s_add_u32 s38, s38, s35")
    lane_consts(a)
    a.valu(f"v_lshlrev_b32 v{VL16}, 4, v1", [VL16], [1])
    a.valu(f"v_add_u32 v{VL16B}, 0x1000, v{VL16}", [VL16B], [VL16])
    for qt in range(4):
        a.valu(f"v_add_u32 v{VOF+qt}, {qt*131072}, v{VL16}", [VOF+qt], [VL16])
    a.salu("s_waitcnt lgkmcnt(0)")
    a.salu("s_mul_i32 s29, s38, 655360")
    srd_from(a, 12, "s72", "s73", "s29", 655360, WOP_OFF)
    a.salu("s_lshl_b32 s29, s33, 4"); a.salu("s_add_u32 s29, s29, s34"); a.salu("s_lshl_b32 s29, s29, 19")
    srd_from(a, 16, "s72", "s73", "s29", 524288, OWS_OFF)
    a.salu("s_lshl_b32 s26, s24, 4")
    a.salu("s_mul_i32 s27, s26, 5120")
    a.salu("s_lshl_b32 s28, s26, 10")
    def issue(k):
        slot = k % D
        a.salu(f"s_add_u32 s29, s27, {k*5120}")
        a.salu(f"s_add_u32 s30, s28, {k*1024}")
        for nt_ in range(5):
            d = RING + 36*slot + 4*nt_
            if nt_ < 4:
                a.vmem_load(f"buffer_load_dwordx4 {vr(d,4)}, v{VL16}, s[12:15], s29 offen offset:{nt_*1024}", range(d, d+4), [VL16], tag=('k', k))
            else:
                a.vmem_load(f"buffer_load_dwordx4 {vr(d,4)}, v{VL16B}, s[12:15], s29 offen", range(d, d+4), [VL16B], tag=('k', k))
        for qt in range(4):
            d = RING + 36*slot + 20 + 4*qt
            a.vmem_load(f"buffer_load_dwordx4 {vr(d,4)}, v{VOF+qt}, s[16:19], s30 offen", range(d, d+4), [VOF+qt], tag=('k', k))
    for k in range(D): issue(k)
    a.salu("s_mul_i32 s29, s34, 163840")
    a.salu("s_mul_i32 s30, s33, 1280"); a.salu("s_add_u32 s29, s29, s30")
    a.salu("s_mul_i32 s30, s35, 160"); a.salu("s_add_u32 s29, s29, s30")
    a.salu("s_sub_u32 s30, 2621440, s29")
    srd_from(a, 20, "s68", "s69", "s29", "s30")
    st = Stamper(a, 14, 15, wshift=3)
    st.setup()
    st(0)
    for k in range(NK):
        slot = k % D
        a.wait_vm(('k', k))
        for nt_ in range(5):
            for qt in range(4):
                d = ACC + 4*(nt_*4 + qt)
                a.mfma('16', d, RING + 36*slot + 4*nt_, RING + 36*slot + 20 + 4*qt, None if k == 0 else d)
        if k + D < NK: issue(k + D)
        if k in (0, 7): st(1 + k // 7)
    st(3)
    a.salu("s_mul_i32 s27, s24, 20480")
    a.valu(f"v_add_u32 v11, s27, v{VL16}", [11], [VL16])
    for tile in range(20):
        d = ACC + 4*tile
        a.ds_write(f"ds_write_b128 v11, {vr(d,4)} offset:{tile*1024}", [11] + list(range(d, d+4)))
        if len(a.lgq) >= 12: a.wait_lg_all()
    a.wait_lg_all()
    a.barrier()
    a.salu("s_lshl_b32 s29, s24, 10")
    for g in range(3):
        a.valu(f"v_add_u32 v{10+g}, s29, v{VL16}", [10+g], [VL16])
        if g: a.valu(f"v_add_u32 v{10+g}, {g*61440}, v{10+g}", [10+g], [10+g])
    a.valu("v_and_b32 v13, 3, v2", [13], [2])
    a.valu("v_lshl_add_u32 v13, v13, 4, v4", [13], [13, 4])
    a.valu("v_mul_u32_u24 v13, 0xa00, v13", [13], [13])
    a.valu("v_lshl_add_u32 v13, v3, 3, v13", [13], [3, 13])
    a.valu("v_lshrrev_b32 v14, 2, v2", [14], [2])
    a.valu(f"v_lshl_add_u32 v{VST}, v14, 5, v13", [VST], [14, 13])
    lskip = a.newlabel("RS")
    for i in range(3):
        if i == 2:
            a.salu("s_cmp_ge_u32 s24, 4")
            a.salu(f"s_cbranch_scc1 {lskip}")
        for src in range(8):
            d = RING + 32*i + 4*src
            ar = 10 + src // 3
            a.ds_read(f"ds_read_b128 {vr(d,4)}, v{ar} offset:{(src%3)*20480 + i*8192}", range(d, d+4), [ar], tag=('R', i))
        a.wait_lg_all()
        d = RING + 32*i
        for step in (4, 2, 1):
            for q in range(step):
                for k in range(4):
                    x, y = d + 4*q + k, d + 4*(q+step) + k
                    a.valu(f"v_add_f32 v{x}, v{x}, v{y}", [x], [x, y])
        a.valu(f"v_cvt_pk_bf16_f32 v{d+4}, v{d}, v{d+1}", [d+4], [d, d+1])
        a.valu(f"v_cvt_pk_bf16_f32 v{d+5}, v{d+2}, v{d+3}", [d+5], [d+2, d+3])
        a.vmem_store(f"buffer_store_dwordx2 {vr(d+4,2)}, v{VST}, s[20:23], 0 offen offset:{i*64}", [VST], [d+4, d+5], tag='st')
    a.label(lskip)
    st(4)
    a.label("oproj_done")
    a.salu("s_endpgm")

def kd(name, vgpr):
    return f""".p2align 6
.amdhsa_kernel {name}
  .amdhsa_next_free_vgpr {vgpr}
  .amdhsa_next_free_sgpr 102
  .amdhsa_accum_offset {vgpr}
  .amdhsa_group_segment_fixed_size 0
  .amdhsa_kernarg_size 104
  .amdhsa_user_sgpr_count 2
  .amdhsa_user_sgpr_kernarg_segment_ptr 1
  .amdhsa_system_sgpr_workgroup_id_x 1
.end_amdhsa_kernel
"""

def main(out):
    hdr = """; Generated by gen/gen_v6.py (hand-written generator).
; @launch kernel=attn_kernel grid=(512,1,1) block=(256,1,1) lds=81920
; @launch kernel=oproj_kernel grid=(256,1,1) block=(512,1,1) lds=163840
.amdgcn_target "amdgcn-amd-amdhsa--gfx950"
.text
"""
    body = ""
    for name, g in (("attn_kernel", gen_attn), ("oproj_kernel", gen_oproj)):
        a = Asm()
        g(a)
        body += f".globl {name}\n.p2align 8\n.type {name},@function\n" + a.text()
    tail = '.section .rodata,"a"\n' + kd("attn_kernel", 232) + kd("oproj_kernel", 256)
    open(out, "w").write(hdr + body + tail)

if __name__ == "__main__":
    main(sys.argv[1] if len(sys.argv) > 1 else f"cdna_kernels/{NAME}.s")
```

```python
import sys, struct, os, math
sys.path.insert(0, 'gen')
from asmlib import *

NAME = "concat_heads__gqa_block_cached__mha_block_cached__near_ridge"
CSCALE = (128 ** -0.5) * math.log2(math.e)
def f32bits(x): return struct.unpack('<I', struct.pack('<f', x))[0]
E = lambda k, d: int(os.environ.get(k, str(d)))
STAMP = E("STAMP", 0); TOUCH = E("TOUCH", 0); AHEAD = E("AHEAD", 4); PRIO = E("PRIO", 1)
WNT = " nt" if E("WNT", 0) else ""
PACKAT = 0 if E("NOPACK", 0) else E("PACKAT", 2)
KVNT = " nt" if E("KVNT", 0) else ""
XNT = " nt" if E("XNT", 0) else ""
QONLY = E("QONLY", 0); NOPACK = E("NOPACK", 0); NOK0 = E("NOK0", 0); NOMMA = E("NOMMA", 0); NODMA = E("NODMA", 0); NOX = E("NOX", 0); NOW = E("NOW", 0)
OST = os.environ.get("OST", "sc1")
OWS_OFF, WOP_OFF, STAMP_OFF = 0, 32 << 20, 64 << 20

def srd_from(a, d, base_lo, base_hi, off_sreg, size, const_off=0):
    a.salu(f"s_add_u32 s{d}, {base_lo}, {off_sreg}")
    a.salu(f"s_addc_u32 s{d+1}, {base_hi}, 0")
    if const_off:
        a.salu(f"s_add_u32 s{d}, s{d}, {const_off}")
        a.salu(f"s_addc_u32 s{d+1}, s{d+1}, 0")
    a.salu(f"s_and_b32 s{d+1}, s{d+1}, 0xffff")
    a.salu(f"s_mov_b32 s{d+2}, {size}")
    a.salu(f"s_mov_b32 s{d+3}, 0x00020000")

class Stamper:
    def __init__(self, a, vtmp, vzero, wshift=2):
        self.a, self.vt, self.vz, self.ws = a, vtmp, vzero, wshift
    def setup(self):
        a = self.a
        if not STAMP: return
        a.salu("s_mov_b32 s78, 0")
        srd_from(a, 80, "s72", "s73", "s78", 1 << 20, STAMP_OFF)
        a.salu(f"s_lshl_b32 s78, s2, {self.ws}"); a.salu("s_add_u32 s78, s78, s24"); a.salu("s_lshl_b32 s78, s78, 8")
    def __call__(self, idx):
        a = self.a
        if not STAMP: return
        a.wait_lg_all()
        a.salu("s_memrealtime s[90:91]")
        a.salu("s_waitcnt lgkmcnt(0)")
        a.valu(f"v_mov_b32 v{self.vt}, s90", [self.vt], [])
        a.vmem_store(f"buffer_store_dword v{self.vt}, v{self.vz}, s[80:83], s78 offen offset:{idx*4}", [self.vz], [self.vt], tag='stamp')

def merge(a, jobs, valus, PD, NB, lead=0, hook=None):
    n = len(jobs); vi = 0
    for i in range(-PD, n):
        if i + PD < n:
            if hook: hook(i + PD)
            jobs[i + PD][0]((i + PD) % NB, ('job', i + PD))
        if i == -1:
            for _ in range(min(lead, len(valus) - vi)):
                valus[vi](); vi += 1
        if i >= 0:
            a.wait_lg(('job', i))
            jobs[i][1](i % NB)
            rem = len(valus) - vi
            k = -(-rem // (n - i))
            for _ in range(k):
                valus[vi](); vi += 1
    while vi < len(valus):
        valus[vi](); vi += 1

def kernargs(a):
    a.salu("s_load_dwordx16 s[48:63], s[0:1], 0")
    a.salu("s_load_dwordx8 s[64:71], s[0:1], 64")
    a.salu("s_load_dwordx2 s[72:73], s[0:1], 96")

def lane_consts(a):
    a.valu("v_and_b32 v1, 63, v0", [1], [0])
    a.valu("v_lshrrev_b32 v2, 6, v0", [2], [0])
    a.valu("v_readfirstlane_b32 s24, v2", [], [2], sdst=['s24'], kind='readlane')
    a.valu("v_lshrrev_b32 v3, 4, v1", [3], [1])
    a.valu("v_and_b32 v4, 15, v1", [4], [1])
    a.valu("v_lshrrev_b32 v5, 5, v1", [5], [1])
    a.valu("v_and_b32 v6, 31, v1", [6], [1])
    a.valu("v_bfe_u32 v7, v1, 2, 2", [7], [1])
    a.valu("v_and_b32 v8, 3, v1", [8], [1])
    a.valu("v_and_b32 v9, 1, v3", [9], [3])
    a.valu("v_mov_b32 v15, 0", [15], [])

def gen_attn(a):
    QF = 16
    OA, SB, FB = 48, [112, 144], 176
    KA, VA, VKV = 200, 208, 216
    M, L, AL, MC, T0, T1, T2, T3 = 220, 221, 222, 224, 225, 226, 227, 228
    VO = 229
    NB = 6
    SLOT = 16384
    NW = E("NW", 4)
    XB = NW * 8192
    a.label("attn_kernel")
    a.salu("s_cmp_ge_u32 s2, 512")
    a.salu("s_cbranch_scc1 attn_done")
    kernargs(a)
    a.salu("s_and_b32 s31, s2, 7")
    if E("MAP", 1):
        a.salu("s_bfe_u32 s32, s2, 0x50003")
        a.salu("s_lshr_b32 s33, s2, 8")
        a.salu("s_and_b32 s35, s32, 7")
        a.salu("s_lshr_b32 s36, s32, 3")
        a.salu("s_lshl_b32 s37, s36, 3")
        a.salu("s_add_u32 s37, s37, s31")
        a.salu("s_and_b32 s34, s31, 3")
    else:
        a.salu("s_lshr_b32 s32, s2, 3")
        a.salu("s_lshr_b32 s33, s31, 2")
        a.salu("s_and_b32 s34, s31, 3")
        a.salu("s_and_b32 s35, s32, 7")
        a.salu("s_lshr_b32 s36, s32, 3")
        a.salu("s_lshl_b32 s37, s36, 2")
        a.salu("s_add_u32 s37, s37, s34")
    a.salu("s_lshl_b32 s38, s33, 3")
    a.salu("s_add_u32 s38, s38, s35")
    a.salu("s_lshr_b32 s39, s31, 2")
    lane_consts(a)
    if PRIO:
        lp = a.newlabel("PR")
        a.salu("s_cmp_ge_u32 s2, 256")
        a.salu(f"s_cbranch_scc1 {lp}")
        a.salu("s_setprio 2")
        a.label(lp)
    for jj in range(4):
        a.valu(f"v_lshl_or_b32 v10, v3, 2, {jj}", [10], [3])
        a.valu("v_xor_b32 v10, v4, v10", [10], [4, 10])
        a.valu("v_lshlrev_b32 v10, 4, v10", [10], [10])
        a.valu(f"v_lshl_add_u32 v{VKV+jj}, v3, 8, v10", [VKV+jj], [3, 10])
    XF, WA, VW, VX, XA, TMP = SB[0], VA, SB[1], SB[1]+2, SB[1]+6, SB[1]+10
    for jj in range(2):
        a.valu(f"v_lshl_or_b32 v10, v2, 1, {jj}", [10], [2])
        a.valu("v_and_b32 v10, 3, v10", [10], [10])
        a.valu("v_lshl_or_b32 v10, v3, 2, v10", [10], [3, 10])
        a.valu("v_xor_b32 v10, v4, v10", [10], [4, 10])
        a.valu("v_lshlrev_b32 v10, 4, v10", [10], [10])
        a.valu("v_lshl_add_u32 v10, v3, 13, v10", [10], [3, 10])
        a.valu(f"v_add_u32 v{VW+jj}, {jj*(4*8192-1024)}, v10", [VW+jj], [10])
    a.valu("v_lshrrev_b32 v11, 3, v1", [11], [1])
    a.valu("v_mul_u32_u24 v11, 0x500, v11", [11], [11])
    a.valu("v_and_b32 v12, 7, v1", [12], [1])
    for jj in range(4):
        a.valu(f"v_add_u32 v10, {(4*jj) & 7}, v3", [10], [3])
        a.valu("v_xor_b32 v10, v12, v10", [10], [12, 10])
        a.valu("v_lshl_add_u32 v10, v10, 4, v11", [10], [10, 11])
        a.valu(f"v_add_u32 v{VX+jj}, {jj*(8*1280-1024)}, v10", [VX+jj], [10])
    a.salu("s_waitcnt lgkmcnt(0)")
    a.salu("s_cmp_eq_u32 s33, 1")
    a.salu("s_cselect_b64 s[40:41], s[58:59], s[48:49]")
    a.salu("s_cselect_b64 s[42:43], s[60:61], s[50:51]")
    a.salu("s_cselect_b64 s[44:45], s[62:63], s[52:53]")
    a.salu("s_cselect_b64 s[46:47], s[64:65], s[54:55]")
    a.salu("s_cmp_eq_u32 s39, 1")
    a.salu("s_cselect_b64 s[74:75], s[66:67], s[56:57]")
    a.salu("s_mul_i32 s29, s35, 163840")
    srd_from(a, 4, "s40", "s41", "s29", 163840)
    a.salu("s_lshl_b32 s93, s37, 8")
    a.salu("s_sub_u32 s30, 5242880, s93")
    srd_from(a, 12, "s46", "s47", "s93", "s30")
    a.salu("s_lshl_b32 s29, s35, 5"); a.salu("s_add_u32 s29, s29, s37"); a.salu("s_lshl_b32 s29, s29, 17")
    srd_from(a, 20, "s42", "s43", "s29", 131072)
    srd_from(a, 96, "s44", "s45", "s29", 131072)
    a.salu("s_lshl_b32 s26, s24, 11")
    a.salu("s_lshl_b32 s27, s24, 16")
    a.salu("s_lshl_b32 s92, s24, 12")
    a.salu(f"s_add_u32 s28, s92, {XB}")
    a.salu("s_mul_i32 s25, s24, 40960")
    RPF = E("RPF", 4)
    quads = [QF + 4*i for i in range(8)] + [232 + 4*i for i in range(6)] + [SB[1] + 12 + 4*i for i in range(5)]
    st = Stamper(a, 230, 15)
    st.setup()
    st(0)

    seq = [('K', 0)]
    for i in range(7): seq += [('K', i + 1), ('V', i)]
    seq += [('V', 7)]
    NP = len(seq)
    PERM = [4, 2, 0, 3, 1]
    def issue_KV(p):
        if NODMA: return
        kind, j = seq[p]
        slot = PERM[p % 5]
        srd = "s[20:23]" if kind == 'K' else "s[96:99]"
        a.salu(f"s_add_u32 m0, s92, {slot*SLOT}", m0=True)
        a.salu(f"s_add_u32 s29, s92, {j*16384}")
        for jj in range(4):
            a.vmem_dma(f"buffer_load_dwordx4 v{VKV+jj}, {srd}, s29 offen offset:{jj*1024}{KVNT} lds", [VKV+jj], tag=('KV', p))
    def issue_W(s_):
        if NODMA or NOW: return
        buf = s_ % NW
        a.salu(f"s_add_u32 m0, s26, {buf*8192}", m0=True)
        a.salu(f"s_add_u32 s29, s27, {s_*32*8192}")
        for jj in range(2):
            a.vmem_dma(f"buffer_load_dwordx4 v{VW+jj}, s[12:15], s29 offen offset:{jj*1024}{WNT} lds", [VW+jj], tag=('W', s_))
    def issue_X(c):
        if NODMA or NOX: return
        a.salu(f"s_add_u32 m0, s28, {(c%2)*16384}", m0=True)
        a.salu(f"s_add_u32 s29, s25, {c*128}")
        for jj in range(4):
            a.vmem_dma(f"buffer_load_dwordx4 v{VX+jj}, s[4:7], s29 offen offset:{jj*1024}{XNT} lds", [VX+jj], tag=('X', c))
    def read_X(c):
        if not E("NOWAIT", 0): a.wait_vm(('X', c))
        if NOMMA: return
        for sp in range(4):
            d = XF + 16*(c % 2) + 4*sp
            a.ds_read(f"ds_read_b128 {vr(d,4)}, v{XA+sp} offset:{(c%2)*16384}", range(d, d+4), [XA+sp], tag=('xf', c))

    BD = E("BDELAY", 0)
    if BD:
        ld, l2 = a.newlabel("BD"), a.newlabel("BE")
        a.salu("s_cmp_lt_u32 s2, 256")
        a.salu(f"s_cbranch_scc1 {l2}")
        a.salu("s_memrealtime s[88:89]"); a.salu("s_waitcnt lgkmcnt(0)")
        a.salu(f"s_add_u32 s88, s88, {BD}")
        a.label(ld)
        a.salu("s_sleep 4")
        a.salu("s_memrealtime s[90:91]"); a.salu("s_waitcnt lgkmcnt(0)")
        a.salu("s_sub_u32 s90, s90, s88")
        a.salu("s_cmp_lt_i32 s90, 0")
        a.salu(f"s_cbranch_scc1 {ld}")
        a.label(l2)
    def do_pack(at_end):
        lpk = a.newlabel("PK")
        a.salu("s_cmp_lt_u32 s2, 256" if not at_end else "s_cmp_ge_u32 s2, 256")
        a.salu(f"s_cbranch_scc1 {lpk}")
        RING = 48; TA, VL16, VL16B = 16, 17, 18
        a.salu("s_lshl_b32 s77, s34, 5"); a.salu("s_add_u32 s77, s77, s32")
        if not at_end: a.salu("s_sub_u32 s77, s77, 32")
        if at_end: a.barrier()
        a.salu("s_mul_i32 s29, s77, 40960")
        srd_from(a, 84, "s74", "s75", "s29", 40960)
        a.salu("s_mul_i32 s29, s39, 5242880")
        srd_from(a, 8, "s72", "s73", "s29", 5242880, WOP_OFF)
        a.valu(f"v_lshlrev_b32 v{VL16}, 4, v1", [VL16], [1])
        a.valu(f"v_add_u32 v{VL16B}, 0x1000, v{VL16}", [VL16B], [VL16])
        a.valu("v_lshl_add_u32 v10, v3, 2, v7", [10], [3, 7])
        a.valu("v_mul_u32_u24 v10, 0x500, v10", [10], [10])
        a.valu("v_lshl_add_u32 v10, v8, 3, v10", [10], [8, 10])
        a.salu("s_mul_i32 s76, s24, 320")
        a.valu(f"v_add_u32 v{TA}, s76, v10", [TA], [10])
        a.salu("s_mul_i32 s76, s24, 10240")
        for grp in range(3):
            a.salu(f"s_add_u32 m0, s76, {grp*4096}", m0=True)
            a.salu(f"s_add_u32 s29, s76, {grp*4096}")
            for jj in range(4 if grp < 2 else 2):
                a.vmem_dma(f"buffer_load_dwordx4 v{VL16}, s[84:87], s29 offen offset:{jj*1024}{KVNT} lds", [VL16], tag="pk")
        a.wait_vm('pk')
        a.barrier()
        for half in range(2):
            for nt_ in range(5):
                for u in range(2):
                    d = RING + 20*half + 4*nt_ + 2*u
                    a.ds_read(f"ds_read_b64_tr_b16 {vr(d,2)}, v{TA} offset:{u*20480+(half*5+nt_)*32}", [d, d+1], [TA], tag=('pr', half))
            a.wait_lg_all()
            a.salu(f"s_lshl_b32 s29, s24, 1"); a.salu(f"s_add_u32 s29, s29, {half}"); a.salu("s_lshl_b32 s29, s29, 7")
            a.salu("s_add_u32 s29, s29, s77"); a.salu("s_mul_i32 s29, s29, 5120")
            for nt_ in range(5):
                d = RING + 20*half + 4*nt_
                if nt_ < 4:
                    a.vmem_store(f"buffer_store_dwordx4 {vr(d,4)}, v{VL16}, s[8:11], s29 offen offset:{nt_*1024} {OST}", [VL16], range(d, d+4), tag='pks')
                else:
                    a.vmem_store(f"buffer_store_dwordx4 {vr(d,4)}, v{VL16B}, s[8:11], s29 offen {OST}", [VL16B], range(d, d+4), tag='pks')
        if not at_end:
            a.barrier()
            a.wait_vm_all()
        a.label(lpk)
        a.vmq.clear()
        a.nop(4)

    if PACKAT == 1: do_pack(False)
    issue_X(0); issue_W(0); issue_W(1); issue_X(1)
    for s_ in range(2, NW): issue_W(s_)
    if TOUCH:
        a.salu("s_lshl_b32 s29, s36, 2"); a.salu("s_add_u32 s29, s29, s24"); a.salu("s_mul_i32 s29, s29, 5120")
        a.valu("v_lshlrev_b32 v10, 7, v1", [10], [1])
        a.valu("v_cmp_gt_u32 vcc, 40, v1", [], [1], sdst=['vcc'])
        a.valu("v_mov_b32 v12, 0x7fffffff", [12], [])
        a.valu("v_cndmask_b32 v10, v12, v10, vcc", [10], [10, 12], ssrc=['vcc'])
        a.vmem_load(f"buffer_load_dword v{TMP}, v10, s[4:7], s29 offen{XNT}", [TMP], [10], tag='pf')
        a.salu("s_mul_i32 s29, s35, 80"); a.salu("s_mul_i32 s30, s24, 20"); a.salu("s_add_u32 s29, s29, s30")
        a.salu("s_lshl_b32 s29, s29, 13")
        a.valu("v_lshrrev_b32 v10, 1, v1", [10], [1])
        a.valu("v_lshlrev_b32 v10, 13, v10", [10], [10])
        a.valu("v_and_b32 v11, 1, v1", [11], [1])
        a.valu("v_lshl_add_u32 v10, v11, 7, v10", [10], [11, 10])
        a.valu("v_cndmask_b32 v10, v12, v10, vcc", [10], [10, 12], ssrc=['vcc'])
        a.vmem_load(f"buffer_load_dword v{TMP+1}, v10, s[12:15], s29 offen{WNT}", [TMP+1], [10], tag='pf')
    if not NOK0: issue_KV(0)
    a.valu("v_bfe_u32 v10, v6, 1, 3", [10], [6])
    a.valu("v_xor_b32 v10, v5, v10", [10], [5, 10])
    a.valu("v_lshlrev_b32 v10, 4, v10", [10], [10])
    a.valu("v_lshl_add_u32 v10, v6, 7, v10", [10], [6, 10])
    a.valu("v_lshl_add_u32 v10, v2, 12, v10", [10], [2, 10])
    a.valu(f"v_add_u32 v10, {XB}, v10", [10], [10])
    for sp in range(4):
        a.valu(f"v_xor_b32 v{XA+sp}, {sp*32}, v10", [XA+sp], [10])
    a.valu("v_and_b32 v10, 1, v8", [10], [8])
    a.valu("v_lshl_or_b32 v10, v9, 1, v10", [10], [9, 10])
    a.valu("v_lshrrev_b32 v11, 1, v8", [11], [8])
    for u in range(2):
        a.valu(f"v_lshl_or_b32 v12, v5, 1, {u}", [12], [5])
        a.valu("v_xor_b32 v13, v10, v12", [13], [10, 12])
        a.valu("v_lshlrev_b32 v13, 4, v13", [13], [13])
        a.valu("v_lshl_add_u32 v13, v11, 3, v13", [13], [11, 13])
        a.valu("v_lshl_add_u32 v14, v12, 2, v7", [14], [12, 7])
        a.valu("v_lshl_add_u32 v13, v14, 8, v13", [13], [14, 13])
        a.valu("v_lshl_add_u32 v13, v7, 6, v13", [13], [7, 13])
        for t in range(4):
            a.valu(f"v_xor_b32 v{WA+2*t+u}, {t*64}, v13", [WA+2*t+u], [13])
    a.valu("v_and_b32 v10, 3, v6", [10], [6])
    a.valu("v_bfe_u32 v11, v6, 2, 2", [11], [6])
    a.valu("v_lshl_or_b32 v10, v10, 2, v11", [10], [10, 11])
    a.valu("v_xor_b32 v10, v5, v10", [10], [5, 10])
    a.valu("v_lshlrev_b32 v10, 4, v10", [10], [10])
    a.valu("v_lshl_add_u32 v10, v6, 8, v10", [10], [6, 10])
    for s_ in range(8):
        a.valu(f"v_xor_b32 v{KA+s_}, {s_*32}, v10", [KA+s_], [10])
    a.valu("v_lshl_add_u32 v10, v2, 1, v9", [10], [2, 9])
    a.valu("v_lshlrev_b32 v10, 17, v10", [10], [10])
    a.valu("v_lshl_add_u32 v11, v5, 4, v4", [11], [5, 4])
    a.valu(f"v_lshl_add_u32 v{VO}, v11, 4, v10", [VO], [11, 10])
    read_X(0)
    jobs = []
    for ks in range(40):
        s_ = ks // 2; sp2 = ks % 2; c = ks // 4; sp = ks % 4
        for t in range(4):
            def rd(buf, tag, s_=s_, sp2=sp2, t=t):
                if NOMMA: return
                for u in range(2):
                    d = FB + 4*buf + 2*u
                    a.ds_read(f"ds_read_b64_tr_b16 {vr(d,2)}, v{WA+2*t+u} offset:{(s_%NW)*8192+sp2*4096}", [d, d+1], [WA+2*t+u], tag=tag)
            def mm(buf, ks=ks, t=t, c=c, sp=sp):
                if NOMMA: return
                a.mfma('32', OA+16*t, FB+4*buf, XF+16*(c % 2)+4*sp, None if ks == 0 else OA+16*t)
            jobs.append((rd, mm))
    def hook(j):
        if j % 8 == 0:
            s_ = j // 8
            if not E("NOWAIT", 0): a.wait_vm(('W', s_))
            if not E("NOBAR", 0): a.barrier()
            if s_ >= 2 and s_ + NW - 2 < 20: issue_W(s_ + NW - 2)
            if RPF and not QONLY and s_ % 4 == 2 and s_ // 4 < RPF:
                pt = s_ // 4 + 1
                kind, j = seq[pt]
                srd = "s[20:23]" if kind == 'K' else "s[96:99]"
                a.salu(f"s_add_u32 s29, s92, {j*16384}")
                for jj in range(4):
                    d = quads[4*(pt-1) + jj]
                    a.vmem_load(f"buffer_load_dwordx4 {vr(d,4)}, v{VKV+jj}, {srd}, s29 offen offset:{jj*1024}{KVNT}", range(d, d+4), [VKV+jj], tag=('RP', pt))
            if not RPF:
                if s_ == 17 and not QONLY: issue_KV(1)
                if s_ == 19 and not QONLY:
                    issue_KV(2)
                    if AHEAD >= 3: issue_KV(3)
            if s_ in (0, 10): st(40 + s_ // 10)
        if j % 16 == 4 and j >= 16:
            c = j // 16
            if c + 2 < 10: issue_X(c + 2)
        if j == 4: issue_X(2)
        if j % 16 == 11:
            c = j // 16
            if c + 1 < 10: read_X(c + 1)
    a.wait_lg(('xf', 0))
    merge(a, jobs, [], 4, NB, hook=hook)
    if RPF and not QONLY:
        a.valu("v_lshlrev_b32 v10, 4, v1", [10], [1])
        a.valu("v_add_u32 v10, s92, v10", [10], [10])
        a.barrier()
        for pt in range(1, RPF + 1):
            a.wait_vm(('RP', pt))
            for jj in range(4):
                d = quads[4*(pt-1) + jj]
                a.ds_write(f"ds_write_b128 v10, {vr(d,4)} offset:{PERM[pt]*SLOT + jj*1024}", [10] + list(range(d, d+4)))
            if pt % 2 == 0: a.wait_lg_all()
        a.wait_lg_all()
        for pt in range(RPF + 1, AHEAD + 1): issue_KV(pt)
    for s_ in range(8):
        t = s_ >> 1
        for ii in range(4):
            r = OA + 16*t + 8*(s_ & 1) + 2*ii
            a.valu(f"v_cvt_pk_bf16_f32 v{QF+4*s_+ii}, v{r}, v{r+1}", [QF+4*s_+ii], [r, r+1])
    st.vt = 14
    a.salu(f"s_mov_b32 s30, 0x{f32bits(CSCALE):08x}")
    a.salu("s_lshl_b32 s29, s38, 20")
    srd_from(a, 4, "s72", "s73", "s29", 1 << 20, OWS_OFF)
    a.valu("v_lshrrev_b32 v10, 1, v8", [10], [8])
    a.valu("v_lshl_or_b32 v10, v9, 1, v10", [10], [9, 10])
    a.valu("v_and_b32 v11, 1, v8", [11], [8])
    for u in range(2):
        a.valu(f"v_or_b32 v12, {2*u}, v5", [12], [5])
        a.valu("v_xor_b32 v13, v10, v12", [13], [10, 12])
        a.valu("v_lshlrev_b32 v13, 4, v13", [13], [13])
        a.valu("v_lshl_add_u32 v13, v11, 3, v13", [13], [11, 13])
        a.valu("v_lshl_add_u32 v14, v12, 2, v7", [14], [12, 7])
        a.valu("v_lshl_add_u32 v13, v14, 8, v13", [13], [14, 13])
        a.valu("v_lshl_add_u32 v13, v7, 6, v13", [13], [7, 13])
        for t in range(4):
            a.valu(f"v_xor_b32 v{VA+2*t+u}, {t*64}, v13", [VA+2*t+u], [13])
    st(1)
    if QONLY: a.salu("s_endpgm")

    base = {'K': 0, 'V': 0}
    def rebase(which, slot):
        regs = range(KA, KA+8) if which == 'K' else range(VA, VA+8)
        need = base[which]
        if slot == 4: need = SLOT
        if slot == 0: need = 0
        if need != base[which]:
            for r in regs:
                if need > base[which]:
                    a.valu(f"v_add_u32 v{r}, {need-base[which]}, v{r}", [r], [r])
                else:
                    a.valu(f"v_subrev_u32 v{r}, {base[which]-need}, v{r}", [r], [r])
            base[which] = need
        return slot * SLOT - base[which]
    def V(text, dst, src, **kw):
        return lambda: a.valu(text, dst, src, **kw)
    def part1(j):
        SS = SB[j % 2]; T = j
        o = []
        if E("NOVALU", 0): return o
        for c_, tr in ((0, T0), (16, T1)):
            o.append(V(f"v_max3_f32 v{tr}, v{SS+c_}, v{SS+c_+1}, v{SS+c_+2}", [tr], [SS+c_, SS+c_+1, SS+c_+2]))
        for k in range(3, 15, 2):
            for c_, tr in ((0, T0), (16, T1)):
                o.append(V(f"v_max3_f32 v{tr}, v{tr}, v{SS+c_+k}, v{SS+c_+k+1}", [tr], [tr, SS+c_+k, SS+c_+k+1]))
        o.append(V(f"v_max3_f32 v{T0}, v{T0}, v{T1}, v{SS+15}", [T0], [T0, T1, SS+15]))
        o.append(V(f"v_max_f32 v{T0}, v{T0}, v{SS+31}", [T0], [T0, SS+31]))
        o.append(V(f"v_mov_b32 v{T1}, v{T0}", [T1], [T0]))
        o.append(V(f"v_permlane32_swap_b32 v{T0}, v{T1}", [T0, T1], [T0, T1], kind='permlane'))
        if T == 0:
            o.append(V(f"v_max_f32 v{M}, v{T0}, v{T1}", [M], [T0, T1]))
        else:
            o.append(V(f"v_max3_f32 v{T2}, v{T0}, v{T1}, v{M}", [T2], [T0, T1, M]))
            o.append(V(f"v_sub_f32 v{T3}, v{M}, v{T2}", [T3], [M, T2]))
            o.append(V(f"v_mul_f32 v{T3}, s30, v{T3}", [T3], [T3]))
            o.append(V(f"v_exp_f32 v{AL}, v{T3}", [AL], [T3], trans=True))
            o.append(V(f"v_mov_b32 v{M}, v{T2}", [M], [T2]))
        o.append(V(f"v_mul_f32 v{MC}, s30, v{M}", [MC], [M]))
        for i in range(32 if not E("NOFMA", 0) else 0):
            o.append(V(f"v_fma_f32 v{SS+i}, v{SS+i}, s30, -v{MC}", [SS+i], [SS+i, MC]))
        return o
    def part2(j):
        SS = SB[j % 2]; T = j
        o = []; resc = []
        if E("NOVALU", 0): return o
        if T > 0 and not E("NORESC", 0):
            for i in range(0, 64, 2):
                resc.append(V(f"v_pk_mul_f32 {vr(OA+i,2)}, {vr(OA+i,2)}, {vr(AL,2)} op_sel_hi:[1,0]", [OA+i, OA+i+1], [OA+i, OA+i+1, AL]))
        for i in range(32):
            if not E("NOEXP", 0): o.append(V(f"v_exp_f32 v{SS+i}, v{SS+i}", [SS+i], [SS+i], trans=True))
            if resc: o.append(resc.pop(0))
        for c_, tr in ((0, T0), (8, T1), (16, T2), (24, T3)):
            o.append(V(f"v_add_f32 v{tr}, v{SS+c_}, v{SS+c_+1}", [tr], [SS+c_, SS+c_+1]))
        for k in range(2, 8):
            for c_, tr in ((0, T0), (8, T1), (16, T2), (24, T3)):
                o.append(V(f"v_add_f32 v{tr}, v{tr}, v{SS+c_+k}", [tr], [tr, SS+c_+k]))
        o.append(V(f"v_add_f32 v{T0}, v{T0}, v{T1}", [T0], [T0, T1]))
        o.append(V(f"v_add_f32 v{T2}, v{T2}, v{T3}", [T2], [T2, T3]))
        if T == 0:
            o.append(V(f"v_add_f32 v{L}, v{T0}, v{T2}", [L], [T0, T2]))
        else:
            o.append(V(f"v_add_f32 v{T0}, v{T0}, v{T2}", [T0], [T0, T2]))
            o.append(V(f"v_fma_f32 v{L}, v{L}, v{AL}, v{T0}", [L], [L, AL, T0]))
        for i in range(16):
            o.append(V(f"v_cvt_pk_bf16_f32 v{SS+i}, v{SS+2*i}, v{SS+2*i+1}", [SS+i], [SS+2*i, SS+2*i+1]))
        return o

    for p in range(NP):
        kind, j = seq[p]
        slot = PERM[p % 5]
        off = rebase(kind, slot)
        a.wait_vm(('KV', p))
        a.barrier()
        if p == 0 and AHEAD >= 4 and not RPF: issue_KV(4)
        if p >= 1 and p + AHEAD < NP and p + AHEAD > RPF: issue_KV(p + AHEAD)
        st(3 + p)
        jobs = []
        if NOMMA: continue
        if kind == 'K':
            SS = SB[j % 2]
            for kt in range(2):
                for s_ in range(8):
                    def rd(buf, tag, kt=kt, s_=s_):
                        d = FB + 4*buf
                        a.ds_read(f"ds_read_b128 {vr(d,4)}, v{KA+s_} offset:{off+kt*8192}", range(d, d+4), [KA+s_], tag=tag)
                    def mm(buf, kt=kt, s_=s_, SS=SS):
                        a.mfma('32', SS+16*kt, FB+4*buf, QF+4*s_, None if s_ == 0 else SS+16*kt)
                    jobs.append((rd, mm))
            merge(a, jobs, part2(j - 1) if j > 0 else [], 5, NB, lead=8)
            if j == 0:
                for f in part1(0): f()
        else:
            if j == 7:
                for f in part2(7): f()
            PP = SB[j % 2]
            for jq in range(4):
                for t in range(4):
                    def rd(buf, tag, jq=jq, t=t):
                        for u in range(2):
                            d = FB + 4*buf + 2*u
                            a.ds_read(f"ds_read_b64_tr_b16 {vr(d,2)}, v{VA+2*t+u} offset:{off+jq*4096}", [d, d+1], [VA+2*t+u], tag=tag)
                    def mm(buf, jq=jq, t=t, j=j, PP=PP):
                        first = (j == 0 and jq == 0)
                        a.mfma('32', OA+16*t, FB+4*buf, PP+4*jq, None if first else OA+16*t)
                    jobs.append((rd, mm))
            merge(a, jobs, part1(j + 1) if j < 7 else [], 4, NB, lead=6)
    TMPO = SB[1]
    a.valu(f"v_mov_b32 v{T0}, v{L}", [T0], [L])
    a.valu(f"v_mov_b32 v{T1}, v{L}", [T1], [L])
    a.valu(f"v_permlane32_swap_b32 v{T0}, v{T1}", [T0, T1], [T0, T1], kind='permlane')
    a.valu(f"v_add_f32 v{T0}, v{T0}, v{T1}", [T0], [T0, T1])
    a.valu(f"v_rcp_f32 v{AL}, v{T0}", [AL], [T0], trans=True)
    a.salu("s_lshl_b32 s29, s37, 12")
    for t in range(4):
        for i in range(0, 16, 2):
            r = OA + 16*t + i
            a.valu(f"v_pk_mul_f32 {vr(r,2)}, {vr(r,2)}, {vr(AL,2)} op_sel_hi:[1,0]", [r, r+1], [r, r+1, AL])
        for piece in range(2):
            d = TMPO + 8*t + 4*piece
            for k, rr in enumerate((4*piece, 4*piece+2, 8+4*piece, 8+4*piece+2)):
                r = OA + 16*t + rr
                a.valu(f"v_cvt_pk_bf16_f32 v{d+k}, v{r}, v{r+1}", [d+k], [r, r+1])
            a.vmem_store(f"buffer_store_dwordx4 {vr(d,4)}, v{VO}, s[4:7], s29 offen offset:{t*1024+piece*512} {OST}", [VO], range(d, d+4), tag='O')
    st(35)
    if PACKAT == 2: do_pack(True)
    a.label("attn_done")
    a.salu("s_endpgm")

def gen_oproj(a):
    ACC, RING = 16, 96
    VL16, VL16B, VOF, VST = 246, 247, 248, 252
    D = 4; NK = 16
    a.label("oproj_kernel")
    a.salu("s_cmp_ge_u32 s2, 256")
    a.salu("s_cbranch_scc1 oproj_done")
    kernargs(a)
    a.salu("s_and_b32 s31, s2, 7")
    a.salu("s_lshr_b32 s32, s2, 3")
    a.salu("s_lshr_b32 s33, s31, 2")
    a.salu("s_bfe_u32 s34, s31, 0x10001")
    a.salu("s_and_b32 s35, s31, 1")
    a.salu("s_and_b32 s36, s32, 7")
    a.salu("s_lshl_b32 s34, s34, 3")
    a.salu("s_add_u32 s34, s34, s36")
    a.salu("s_lshr_b32 s36, s32, 3")
    a.salu("s_lshl_b32 s35, s35, 2")
    a.salu("s_add_u32 s35, s35, s36")
    a.salu("s_lshl_b32 s38, s33, 3"); a.salu("s_add_u32 s38, s38, s35")
    lane_consts(a)
    a.valu(f"v_lshlrev_b32 v{VL16}, 4, v1", [VL16], [1])
    a.valu(f"v_add_u32 v{VL16B}, 0x1000, v{VL16}", [VL16B], [VL16])
    for qt in range(4):
        a.valu(f"v_add_u32 v{VOF+qt}, {qt*131072}, v{VL16}", [VOF+qt], [VL16])
    a.salu("s_waitcnt lgkmcnt(0)")
    if E("RAWWO", 0):
        VWO, TA = 240, 245
        BF, AF = 96, 160
        a.salu("s_cmp_eq_u32 s33, 1")
        a.salu("s_cselect_b64 s[74:75], s[66:67], s[56:57]")
        a.salu("s_mul_i32 s29, s35, 160")
        a.salu("s_sub_u32 s30, 5242880, s29")
        srd_from(a, 12, "s74", "s75", "s29", "s30")
        a.salu("s_lshl_b32 s29, s33, 4"); a.salu("s_add_u32 s29, s29, s34"); a.salu("s_lshl_b32 s29, s29, 19")
        srd_from(a, 16, "s72", "s73", "s29", 524288, OWS_OFF)
        a.salu("s_mov_b32 s30, 0x1999999a")
        for jj in range(5):
            a.valu(f"v_add_u32 v10, {64*jj}, v1", [10], [1])
            a.valu("v_mul_hi_u32 v11, v10, s30", [11], [10])
            a.valu("v_mul_u32_u24 v12, 10, v11", [12], [11])
            a.valu("v_sub_u32 v12, v10, v12", [12], [10, 12])
            a.valu("v_mul_u32_u24 v11, 0x500, v11", [11], [11])
            a.valu(f"v_lshl_add_u32 v{VWO+jj}, v12, 4, v11", [VWO+jj], [12, 11])
            if 0 < jj < 4:
                a.valu(f"v_subrev_u32 v{VWO+jj}, {1024*jj}, v{VWO+jj}", [VWO+jj], [VWO+jj])
        a.salu("s_mul_i32 s76, s24, 20480")
        a.valu("v_lshl_add_u32 v10, v3, 2, v7", [10], [3, 7])
        a.valu("v_mul_u32_u24 v10, 160, v10", [10], [10])
        a.valu("v_lshl_add_u32 v10, v8, 3, v10", [10], [8, 10])
        a.valu(f"v_add_u32 v{TA}, s76, v10", [TA], [10])
        a.salu("s_lshl_b32 s26, s24, 4")
        a.salu("s_mul_i32 s27, s26, 40960")
        a.salu("s_lshl_b32 s28, s26, 10")
        def issue_A(k):
            slot = k % D
            a.salu(f"s_add_u32 m0, s76, {slot*5120}", m0=True)
            a.salu(f"s_add_u32 s29, s27, {k*40960}")
            for jj in range(4):
                a.vmem_dma(f"buffer_load_dwordx4 v{VWO+jj}, s[12:15], s29 offen offset:{jj*1024} lds", [VWO+jj], tag=('A', k))
            a.salu(f"s_add_u32 m0, s76, {slot*5120+4096}", m0=True)
            a.vmem_dma(f"buffer_load_dwordx4 v{VWO+4}, s[12:15], s29 offen lds", [VWO+4], tag=('A', k))
        def issue_B(k):
            slot = k % D
            a.salu(f"s_add_u32 s30, s28, {k*1024}")
            for qt in range(4):
                d = BF + 16*slot + 4*qt
                a.vmem_load(f"buffer_load_dwordx4 {vr(d,4)}, v{VOF+qt}, s[16:19], s30 offen", range(d, d+4), [VOF+qt], tag=('B', k))
        def read_A(k):
            slot = k % D
            ab = AF + 20 * (k % 2)
            for nt_ in range(5):
                for u in range(2):
                    d = ab + 4*nt_ + 2*u
                    a.ds_read(f"ds_read_b64_tr_b16 {vr(d,2)}, v{TA} offset:{slot*5120+u*2560+nt_*32}", [d, d+1], [TA], tag=('Af', k, nt_))
        for k in range(D - 1): issue_A(k); issue_B(k)
        a.salu("s_mul_i32 s29, s34, 163840")
        a.salu("s_mul_i32 s30, s33, 1280"); a.salu("s_add_u32 s29, s29, s30")
        a.salu("s_mul_i32 s30, s35, 160"); a.salu("s_add_u32 s29, s29, s30")
        a.salu("s_sub_u32 s30, 2621440, s29")
        srd_from(a, 20, "s68", "s69", "s29", "s30")
        st = Stamper(a, 14, 15, wshift=3)
        st.setup()
        a.wait_vm(('A', 0))
        read_A(0)
        for k in range(NK):
            slot = k % D
            ab = AF + 20 * (k % 2)
            if k + D - 1 < NK:
                issue_A(k + D - 1); issue_B(k + D - 1)
            a.wait_vm(('B', k))
            for nt_ in range(5):
                a.wait_lg(('Af', k, nt_))
                for qt in range(4):
                    d = ACC + 4*(nt_*4 + qt)
                    a.mfma('16', d, ab + 4*nt_, BF + 16*slot + 4*qt, None if k == 0 else d)
                if nt_ == 2 and k + 1 < NK:
                    a.wait_vm(('A', k + 1))
                    read_A(k + 1)
    else:
        a.salu("s_mul_i32 s29, s38, 655360")
        srd_from(a, 12, "s72", "s73", "s29", 655360, WOP_OFF)
        a.salu("s_lshl_b32 s29, s33, 4"); a.salu("s_add_u32 s29, s29, s34"); a.salu("s_lshl_b32 s29, s29, 19")
        srd_from(a, 16, "s72", "s73", "s29", 524288, OWS_OFF)
        a.salu("s_lshl_b32 s26, s24, 4")
        a.salu("s_mul_i32 s27, s26, 5120")
        a.salu("s_lshl_b32 s28, s26, 10")
        def issue(k):
            slot = k % D
            a.salu(f"s_add_u32 s29, s27, {k*5120}")
            a.salu(f"s_add_u32 s30, s28, {k*1024}")
            for nt_ in range(5):
                d = RING + 36*slot + 4*nt_
                if nt_ < 4:
                    a.vmem_load(f"buffer_load_dwordx4 {vr(d,4)}, v{VL16}, s[12:15], s29 offen offset:{nt_*1024}", range(d, d+4), [VL16], tag=('k', k))
                else:
                    a.vmem_load(f"buffer_load_dwordx4 {vr(d,4)}, v{VL16B}, s[12:15], s29 offen", range(d, d+4), [VL16B], tag=('k', k))
            for qt in range(4):
                d = RING + 36*slot + 20 + 4*qt
                a.vmem_load(f"buffer_load_dwordx4 {vr(d,4)}, v{VOF+qt}, s[16:19], s30 offen", range(d, d+4), [VOF+qt], tag=('k', k))
        for k in range(D): issue(k)
        a.salu("s_mul_i32 s29, s34, 163840")
        a.salu("s_mul_i32 s30, s33, 1280"); a.salu("s_add_u32 s29, s29, s30")
        a.salu("s_mul_i32 s30, s35, 160"); a.salu("s_add_u32 s29, s29, s30")
        a.salu("s_sub_u32 s30, 2621440, s29")
        srd_from(a, 20, "s68", "s69", "s29", "s30")
        st = Stamper(a, 14, 15, wshift=3)
        st.setup()
        st(0)
        for k in range(NK):
            slot = k % D
            a.wait_vm(('k', k))
            for nt_ in range(5):
                for qt in range(4):
                    d = ACC + 4*(nt_*4 + qt)
                    a.mfma('16', d, RING + 36*slot + 4*nt_, RING + 36*slot + 20 + 4*qt, None if k == 0 else d)
            if k + D < NK: issue(k + D)
            if k in (0, 7): st(1 + k // 7)
    st(3)
    a.salu("s_mul_i32 s27, s24, 20480")
    a.valu(f"v_add_u32 v11, s27, v{VL16}", [11], [VL16])
    for tile in range(20):
        d = ACC + 4*tile
        a.ds_write(f"ds_write_b128 v11, {vr(d,4)} offset:{tile*1024}", [11] + list(range(d, d+4)))
        if len(a.lgq) >= 12: a.wait_lg_all()
    a.wait_lg_all()
    a.barrier()
    a.salu("s_lshl_b32 s29, s24, 10")
    for g in range(3):
        a.valu(f"v_add_u32 v{10+g}, s29, v{VL16}", [10+g], [VL16])
        if g: a.valu(f"v_add_u32 v{10+g}, {g*61440}, v{10+g}", [10+g], [10+g])
    a.valu("v_and_b32 v13, 3, v2", [13], [2])
    a.valu("v_lshl_add_u32 v13, v13, 4, v4", [13], [13, 4])
    a.valu("v_mul_u32_u24 v13, 0xa00, v13", [13], [13])
    a.valu("v_lshl_add_u32 v13, v3, 3, v13", [13], [3, 13])
    a.valu("v_lshrrev_b32 v14, 2, v2", [14], [2])
    a.valu(f"v_lshl_add_u32 v{VST}, v14, 5, v13", [VST], [14, 13])
    lskip = a.newlabel("RS")
    for i in range(3):
        if i == 2:
            a.salu("s_cmp_ge_u32 s24, 4")
            a.salu(f"s_cbranch_scc1 {lskip}")
        for src in range(8):
            d = RING + 32*i + 4*src
            ar = 10 + src // 3
            a.ds_read(f"ds_read_b128 {vr(d,4)}, v{ar} offset:{(src%3)*20480 + i*8192}", range(d, d+4), [ar], tag=('R', i))
        a.wait_lg_all()
        d = RING + 32*i
        for step in (4, 2, 1):
            for q in range(step):
                for k in range(4):
                    x, y = d + 4*q + k, d + 4*(q+step) + k
                    a.valu(f"v_add_f32 v{x}, v{x}, v{y}", [x], [x, y])
        a.valu(f"v_cvt_pk_bf16_f32 v{d+4}, v{d}, v{d+1}", [d+4], [d, d+1])
        a.valu(f"v_cvt_pk_bf16_f32 v{d+5}, v{d+2}, v{d+3}", [d+5], [d+2, d+3])
        a.vmem_store(f"buffer_store_dwordx2 {vr(d+4,2)}, v{VST}, s[20:23], 0 offen offset:{i*64}", [VST], [d+4, d+5], tag='st')
    a.label(lskip)
    st(4)
    a.label("oproj_done")
    a.salu("s_endpgm")

def kd(name, vgpr):
    return f""".p2align 6
.amdhsa_kernel {name}
  .amdhsa_next_free_vgpr {vgpr}
  .amdhsa_next_free_sgpr 102
  .amdhsa_accum_offset {vgpr}
  .amdhsa_group_segment_fixed_size 0
  .amdhsa_kernarg_size 104
  .amdhsa_user_sgpr_count 2
  .amdhsa_user_sgpr_kernarg_segment_ptr 1
  .amdhsa_system_sgpr_workgroup_id_x 1
.end_amdhsa_kernel
"""

def main(out):
    hdr = """; Generated by gen/gen_v6.py (hand-written generator).
; @launch kernel=attn_kernel grid=(512,1,1) block=(256,1,1) lds=81920
; @launch kernel=oproj_kernel grid=(256,1,1) block=(512,1,1) lds=163840
.amdgcn_target "amdgcn-amd-amdhsa--gfx950"
.text
"""
    body = ""
    for name, g in (("attn_kernel", gen_attn), ("oproj_kernel", gen_oproj)):
        a = Asm()
        g(a)
        body += f".globl {name}\n.p2align 8\n.type {name},@function\n" + a.text()
    tail = '.section .rodata,"a"\n' + kd("attn_kernel", 256) + kd("oproj_kernel", 256)
    open(out, "w").write(hdr + body + tail)

if __name__ == "__main__":
    main(sys.argv[1] if len(sys.argv) > 1 else f"cdna_kernels/{NAME}.s")
```

```python
import sys, struct, os, math
sys.path.insert(0, 'gen')
from asmlib import *

NAME = "concat_heads__gqa_block_cached__mha_block_cached__near_ridge"
CSCALE = (128 ** -0.5) * math.log2(math.e)
def f32bits(x): return struct.unpack('<I', struct.pack('<f', x))[0]
E = lambda k, d: int(os.environ.get(k, str(d)))
STAMP = E("STAMP", 0); TOUCH = E("TOUCH", 0); AHEAD = E("AHEAD", 3); PRIO = E("PRIO", 1)
WNT = " nt" if E("WNT", 0) else ""
PACKAT = 0 if E("NOPACK", 0) else E("PACKAT", 2)
KVNT = " nt" if E("KVNT", 0) else ""
XNT = " nt" if E("XNT", 0) else ""
QONLY = E("QONLY", 0); NOPACK = E("NOPACK", 0); NOK0 = E("NOK0", 0); NOMMA = E("NOMMA", 0); NODMA = E("NODMA", 0); NOX = E("NOX", 0); NOW = E("NOW", 0)
OST = os.environ.get("OST", "sc1")
OWS_OFF, WOP_OFF, STAMP_OFF = 0, 32 << 20, 64 << 20

def srd_from(a, d, base_lo, base_hi, off_sreg, size, const_off=0):
    a.salu(f"s_add_u32 s{d}, {base_lo}, {off_sreg}")
    a.salu(f"s_addc_u32 s{d+1}, {base_hi}, 0")
    if const_off:
        a.salu(f"s_add_u32 s{d}, s{d}, {const_off}")
        a.salu(f"s_addc_u32 s{d+1}, s{d+1}, 0")
    a.salu(f"s_and_b32 s{d+1}, s{d+1}, 0xffff")
    a.salu(f"s_mov_b32 s{d+2}, {size}")
    a.salu(f"s_mov_b32 s{d+3}, 0x00020000")

class Stamper:
    def __init__(self, a, vtmp, vzero, wshift=2):
        self.a, self.vt, self.vz, self.ws = a, vtmp, vzero, wshift
    def setup(self):
        a = self.a
        if not STAMP: return
        a.salu("s_mov_b32 s78, 0")
        srd_from(a, 80, "s72", "s73", "s78", 1 << 20, STAMP_OFF)
        a.salu(f"s_lshl_b32 s78, s2, {self.ws}"); a.salu("s_add_u32 s78, s78, s24"); a.salu("s_lshl_b32 s78, s78, 8")
    def __call__(self, idx):
        a = self.a
        if not STAMP: return
        a.wait_lg_all()
        a.salu("s_memrealtime s[90:91]")
        a.salu("s_waitcnt lgkmcnt(0)")
        a.valu(f"v_mov_b32 v{self.vt}, s90", [self.vt], [])
        a.vmem_store(f"buffer_store_dword v{self.vt}, v{self.vz}, s[80:83], s78 offen offset:{idx*4}", [self.vz], [self.vt], tag='stamp')

def merge(a, jobs, valus, PD, NB, lead=0, hook=None):
    n = len(jobs); vi = 0
    for i in range(-PD, n):
        if i + PD < n:
            if hook: hook(i + PD)
            jobs[i + PD][0]((i + PD) % NB, ('job', i + PD))
        if i == -1:
            for _ in range(min(lead, len(valus) - vi)):
                valus[vi](); vi += 1
        if i >= 0:
            a.wait_lg(('job', i))
            jobs[i][1](i % NB)
            rem = len(valus) - vi
            k = -(-rem // (n - i))
            for _ in range(k):
                valus[vi](); vi += 1
    while vi < len(valus):
        valus[vi](); vi += 1

def kernargs(a):
    a.salu("s_load_dwordx16 s[48:63], s[0:1], 0")
    a.salu("s_load_dwordx8 s[64:71], s[0:1], 64")
    a.salu("s_load_dwordx2 s[72:73], s[0:1], 96")

def lane_consts(a):
    a.valu("v_and_b32 v1, 63, v0", [1], [0])
    a.valu("v_lshrrev_b32 v2, 6, v0", [2], [0])
    a.valu("v_readfirstlane_b32 s24, v2", [], [2], sdst=['s24'], kind='readlane')
    a.valu("v_lshrrev_b32 v3, 4, v1", [3], [1])
    a.valu("v_and_b32 v4, 15, v1", [4], [1])
    a.valu("v_lshrrev_b32 v5, 5, v1", [5], [1])
    a.valu("v_and_b32 v6, 31, v1", [6], [1])
    a.valu("v_bfe_u32 v7, v1, 2, 2", [7], [1])
    a.valu("v_and_b32 v8, 3, v1", [8], [1])
    a.valu("v_and_b32 v9, 1, v3", [9], [3])
    a.valu("v_mov_b32 v15, 0", [15], [])

def gen_attn(a):
    QF = 16
    OA, SB, FB = 48, [112, 144], 176
    KA, VA, VKV = 200, 208, 216
    M, L, AL, MC, T0, T1, T2, T3 = 220, 221, 222, 224, 225, 226, 227, 228
    VO = 229
    NB = 6
    SLOT = 16384
    NW = E("NW", 4)
    XB = NW * 8192
    a.label("attn_kernel")
    a.salu("s_cmp_ge_u32 s2, 512")
    a.salu("s_cbranch_scc1 attn_done")
    kernargs(a)
    a.salu("s_and_b32 s31, s2, 7")
    if E("MAP", 1):
        a.salu("s_bfe_u32 s32, s2, 0x50003")
        a.salu("s_lshr_b32 s33, s2, 8")
        a.salu("s_and_b32 s35, s32, 7")
        a.salu("s_lshr_b32 s36, s32, 3")
        a.salu("s_lshl_b32 s37, s36, 3")
        a.salu("s_add_u32 s37, s37, s31")
        a.salu("s_and_b32 s34, s31, 3")
    else:
        a.salu("s_lshr_b32 s32, s2, 3")
        a.salu("s_lshr_b32 s33, s31, 2")
        a.salu("s_and_b32 s34, s31, 3")
        a.salu("s_and_b32 s35, s32, 7")
        a.salu("s_lshr_b32 s36, s32, 3")
        a.salu("s_lshl_b32 s37, s36, 2")
        a.salu("s_add_u32 s37, s37, s34")
    a.salu("s_lshl_b32 s38, s33, 3")
    a.salu("s_add_u32 s38, s38, s35")
    a.salu("s_lshr_b32 s39, s31, 2")
    lane_consts(a)
    if PRIO:
        lp = a.newlabel("PR")
        a.salu("s_cmp_ge_u32 s2, 256")
        a.salu(f"s_cbranch_scc1 {lp}")
        a.salu("s_setprio 2")
        a.label(lp)
    for jj in range(4):
        a.valu(f"v_lshl_or_b32 v10, v3, 2, {jj}", [10], [3])
        a.valu("v_xor_b32 v10, v4, v10", [10], [4, 10])
        a.valu("v_lshlrev_b32 v10, 4, v10", [10], [10])
        a.valu(f"v_lshl_add_u32 v{VKV+jj}, v3, 8, v10", [VKV+jj], [3, 10])
    XF, WA, VW, VX, XA, TMP = SB[0], VA, SB[1], SB[1]+2, SB[1]+6, SB[1]+10
    for jj in range(2):
        a.valu(f"v_lshl_or_b32 v10, v2, 1, {jj}", [10], [2])
        a.valu("v_and_b32 v10, 3, v10", [10], [10])
        a.valu("v_lshl_or_b32 v10, v3, 2, v10", [10], [3, 10])
        a.valu("v_xor_b32 v10, v4, v10", [10], [4, 10])
        a.valu("v_lshlrev_b32 v10, 4, v10", [10], [10])
        a.valu("v_lshl_add_u32 v10, v3, 13, v10", [10], [3, 10])
        a.valu(f"v_add_u32 v{VW+jj}, {jj*(4*8192-1024)}, v10", [VW+jj], [10])
    a.valu("v_lshrrev_b32 v11, 3, v1", [11], [1])
    a.valu("v_mul_u32_u24 v11, 0x500, v11", [11], [11])
    a.valu("v_and_b32 v12, 7, v1", [12], [1])
    for jj in range(4):
        a.valu(f"v_add_u32 v10, {(4*jj) & 7}, v3", [10], [3])
        a.valu("v_xor_b32 v10, v12, v10", [10], [12, 10])
        a.valu("v_lshl_add_u32 v10, v10, 4, v11", [10], [10, 11])
        a.valu(f"v_add_u32 v{VX+jj}, {jj*(8*1280-1024)}, v10", [VX+jj], [10])
    a.salu("s_waitcnt lgkmcnt(0)")
    a.salu("s_cmp_eq_u32 s33, 1")
    a.salu("s_cselect_b64 s[40:41], s[58:59], s[48:49]")
    a.salu("s_cselect_b64 s[42:43], s[60:61], s[50:51]")
    a.salu("s_cselect_b64 s[44:45], s[62:63], s[52:53]")
    a.salu("s_cselect_b64 s[46:47], s[64:65], s[54:55]")
    a.salu("s_cmp_eq_u32 s39, 1")
    a.salu("s_cselect_b64 s[74:75], s[66:67], s[56:57]")
    a.salu("s_mul_i32 s29, s35, 163840")
    srd_from(a, 4, "s40", "s41", "s29", 163840)
    a.salu("s_lshl_b32 s93, s37, 8")
    a.salu("s_sub_u32 s30, 5242880, s93")
    srd_from(a, 12, "s46", "s47", "s93", "s30")
    a.salu("s_lshl_b32 s29, s35, 5"); a.salu("s_add_u32 s29, s29, s37"); a.salu("s_lshl_b32 s29, s29, 17")
    srd_from(a, 20, "s42", "s43", "s29", 131072)
    srd_from(a, 96, "s44", "s45", "s29", 131072)
    a.salu("s_lshl_b32 s26, s24, 11")
    a.salu("s_lshl_b32 s27, s24, 16")
    a.salu("s_lshl_b32 s92, s24, 12")
    a.salu(f"s_add_u32 s28, s92, {XB}")
    a.salu("s_mul_i32 s25, s24, 40960")
    RPF = E("RPF", 0)
    quads = [QF + 4*i for i in range(8)] + [232 + 4*i for i in range(6)] + [SB[1] + 12 + 4*i for i in range(5)]
    st = Stamper(a, 230, 15)
    st.setup()
    st(0)

    seq = [('K', 0)]
    for i in range(7): seq += [('K', i + 1), ('V', i)]
    seq += [('V', 7)]
    NP = len(seq)
    PERM = [4, 2, 0, 3, 1]
    def issue_KV(p):
        if NODMA: return
        kind, j = seq[p]
        slot = PERM[p % 5]
        srd = "s[20:23]" if kind == 'K' else "s[96:99]"
        a.salu(f"s_add_u32 m0, s92, {slot*SLOT}", m0=True)
        a.salu(f"s_add_u32 s29, s92, {j*16384}")
        for jj in range(4):
            a.vmem_dma(f"buffer_load_dwordx4 v{VKV+jj}, {srd}, s29 offen offset:{jj*1024}{KVNT} lds", [VKV+jj], tag=('KV', p))
    def issue_W(s_):
        if NODMA or NOW: return
        buf = s_ % NW
        a.salu(f"s_add_u32 m0, s26, {buf*8192}", m0=True)
        a.salu(f"s_add_u32 s29, s27, {s_*32*8192}")
        for jj in range(2):
            a.vmem_dma(f"buffer_load_dwordx4 v{VW+jj}, s[12:15], s29 offen offset:{jj*1024}{WNT} lds", [VW+jj], tag=('W', s_))
    def issue_X(c):
        if NODMA or NOX: return
        a.salu(f"s_add_u32 m0, s28, {(c%2)*16384}", m0=True)
        a.salu(f"s_add_u32 s29, s25, {c*128}")
        for jj in range(4):
            a.vmem_dma(f"buffer_load_dwordx4 v{VX+jj}, s[4:7], s29 offen offset:{jj*1024}{XNT} lds", [VX+jj], tag=('X', c))
    def read_X(c):
        if not E("NOWAIT", 0): a.wait_vm(('X', c))
        if NOMMA: return
        for sp in range(4):
            d = XF + 16*(c % 2) + 4*sp
            a.ds_read(f"ds_read_b128 {vr(d,4)}, v{XA+sp} offset:{(c%2)*16384}", range(d, d+4), [XA+sp], tag=('xf', c))

    BD = E("BDELAY", 0)
    if BD:
        ld, l2 = a.newlabel("BD"), a.newlabel("BE")
        a.salu("s_cmp_lt_u32 s2, 256")
        a.salu(f"s_cbranch_scc1 {l2}")
        a.salu("s_memrealtime s[88:89]"); a.salu("s_waitcnt lgkmcnt(0)")
        a.salu(f"s_add_u32 s88, s88, {BD}")
        a.label(ld)
        a.salu("s_sleep 4")
        a.salu("s_memrealtime s[90:91]"); a.salu("s_waitcnt lgkmcnt(0)")
        a.salu("s_sub_u32 s90, s90, s88")
        a.salu("s_cmp_lt_i32 s90, 0")
        a.salu(f"s_cbranch_scc1 {ld}")
        a.label(l2)
    def do_pack(at_end):
        lpk = a.newlabel("PK")
        a.salu("s_cmp_lt_u32 s2, 256" if not at_end else "s_cmp_ge_u32 s2, 256")
        a.salu(f"s_cbranch_scc1 {lpk}")
        RING = 48; TA, VL16, VL16B = 16, 17, 18
        a.salu("s_lshl_b32 s77, s34, 5"); a.salu("s_add_u32 s77, s77, s32")
        if not at_end and not E("MAP", 1): a.salu("s_sub_u32 s77, s77, 32")
        if at_end: a.barrier()
        a.salu("s_mul_i32 s29, s77, 40960")
        srd_from(a, 84, "s74", "s75", "s29", 40960)
        a.salu("s_mul_i32 s29, s39, 5242880")
        srd_from(a, 8, "s72", "s73", "s29", 5242880, WOP_OFF)
        a.valu(f"v_lshlrev_b32 v{VL16}, 4, v1", [VL16], [1])
        a.valu(f"v_add_u32 v{VL16B}, 0x1000, v{VL16}", [VL16B], [VL16])
        a.valu("v_lshl_add_u32 v10, v3, 2, v7", [10], [3, 7])
        a.valu("v_mul_u32_u24 v10, 0x500, v10", [10], [10])
        a.valu("v_lshl_add_u32 v10, v8, 3, v10", [10], [8, 10])
        a.salu("s_mul_i32 s76, s24, 320")
        a.valu(f"v_add_u32 v{TA}, s76, v10", [TA], [10])
        a.salu("s_mul_i32 s76, s24, 10240")
        for grp in range(3):
            a.salu(f"s_add_u32 m0, s76, {grp*4096}", m0=True)
            a.salu(f"s_add_u32 s29, s76, {grp*4096}")
            for jj in range(4 if grp < 2 else 2):
                a.vmem_dma(f"buffer_load_dwordx4 v{VL16}, s[84:87], s29 offen offset:{jj*1024}{KVNT} lds", [VL16], tag="pk")
        a.wait_vm('pk')
        a.barrier()
        for half in range(2):
            for nt_ in range(5):
                for u in range(2):
                    d = RING + 20*half + 4*nt_ + 2*u
                    a.ds_read(f"ds_read_b64_tr_b16 {vr(d,2)}, v{TA} offset:{u*20480+(half*5+nt_)*32}", [d, d+1], [TA], tag=('pr', half))
            a.wait_lg_all()
            a.salu(f"s_lshl_b32 s29, s24, 1"); a.salu(f"s_add_u32 s29, s29, {half}"); a.salu("s_lshl_b32 s29, s29, 7")
            a.salu("s_add_u32 s29, s29, s77"); a.salu("s_mul_i32 s29, s29, 5120")
            for nt_ in range(5):
                d = RING + 20*half + 4*nt_
                if nt_ < 4:
                    a.vmem_store(f"buffer_store_dwordx4 {vr(d,4)}, v{VL16}, s[8:11], s29 offen offset:{nt_*1024} {OST}", [VL16], range(d, d+4), tag='pks')
                else:
                    a.vmem_store(f"buffer_store_dwordx4 {vr(d,4)}, v{VL16B}, s[8:11], s29 offen {OST}", [VL16B], range(d, d+4), tag='pks')
        if not at_end:
            a.barrier()
            if E("PKDRAIN", 0): a.wait_vm_all()
        a.label(lpk)
        a.vmq.clear()
        a.nop(4)

    if PACKAT == 1: do_pack(False)
    issue_X(0); issue_W(0); issue_W(1); issue_X(1)
    for s_ in range(2, NW): issue_W(s_)
    if TOUCH:
        a.salu("s_lshl_b32 s29, s36, 2"); a.salu("s_add_u32 s29, s29, s24"); a.salu("s_mul_i32 s29, s29, 5120")
        a.valu("v_lshlrev_b32 v10, 7, v1", [10], [1])
        a.valu("v_cmp_gt_u32 vcc, 40, v1", [], [1], sdst=['vcc'])
        a.valu("v_mov_b32 v12, 0x7fffffff", [12], [])
        a.valu("v_cndmask_b32 v10, v12, v10, vcc", [10], [10, 12], ssrc=['vcc'])
        a.vmem_load(f"buffer_load_dword v{TMP}, v10, s[4:7], s29 offen{XNT}", [TMP], [10], tag='pf')
        a.salu("s_mul_i32 s29, s35, 80"); a.salu("s_mul_i32 s30, s24, 20"); a.salu("s_add_u32 s29, s29, s30")
        a.salu("s_lshl_b32 s29, s29, 13")
        a.valu("v_lshrrev_b32 v10, 1, v1", [10], [1])
        a.valu("v_lshlrev_b32 v10, 13, v10", [10], [10])
        a.valu("v_and_b32 v11, 1, v1", [11], [1])
        a.valu("v_lshl_add_u32 v10, v11, 7, v10", [10], [11, 10])
        a.valu("v_cndmask_b32 v10, v12, v10, vcc", [10], [10, 12], ssrc=['vcc'])
        a.vmem_load(f"buffer_load_dword v{TMP+1}, v10, s[12:15], s29 offen{WNT}", [TMP+1], [10], tag='pf')
    if not NOK0: issue_KV(0)
    a.valu("v_bfe_u32 v10, v6, 1, 3", [10], [6])
    a.valu("v_xor_b32 v10, v5, v10", [10], [5, 10])
    a.valu("v_lshlrev_b32 v10, 4, v10", [10], [10])
    a.valu("v_lshl_add_u32 v10, v6, 7, v10", [10], [6, 10])
    a.valu("v_lshl_add_u32 v10, v2, 12, v10", [10], [2, 10])
    a.valu(f"v_add_u32 v10, {XB}, v10", [10], [10])
    for sp in range(4):
        a.valu(f"v_xor_b32 v{XA+sp}, {sp*32}, v10", [XA+sp], [10])
    a.valu("v_and_b32 v10, 1, v8", [10], [8])
    a.valu("v_lshl_or_b32 v10, v9, 1, v10", [10], [9, 10])
    a.valu("v_lshrrev_b32 v11, 1, v8", [11], [8])
    for u in range(2):
        a.valu(f"v_lshl_or_b32 v12, v5, 1, {u}", [12], [5])
        a.valu("v_xor_b32 v13, v10, v12", [13], [10, 12])
        a.valu("v_lshlrev_b32 v13, 4, v13", [13], [13])
        a.valu("v_lshl_add_u32 v13, v11, 3, v13", [13], [11, 13])
        a.valu("v_lshl_add_u32 v14, v12, 2, v7", [14], [12, 7])
        a.valu("v_lshl_add_u32 v13, v14, 8, v13", [13], [14, 13])
        a.valu("v_lshl_add_u32 v13, v7, 6, v13", [13], [7, 13])
        for t in range(4):
            a.valu(f"v_xor_b32 v{WA+2*t+u}, {t*64}, v13", [WA+2*t+u], [13])
    a.valu("v_and_b32 v10, 3, v6", [10], [6])
    a.valu("v_bfe_u32 v11, v6, 2, 2", [11], [6])
    a.valu("v_lshl_or_b32 v10, v10, 2, v11", [10], [10, 11])
    a.valu("v_xor_b32 v10, v5, v10", [10], [5, 10])
    a.valu("v_lshlrev_b32 v10, 4, v10", [10], [10])
    a.valu("v_lshl_add_u32 v10, v6, 8, v10", [10], [6, 10])
    for s_ in range(8):
        a.valu(f"v_xor_b32 v{KA+s_}, {s_*32}, v10", [KA+s_], [10])
    a.valu("v_lshl_add_u32 v10, v2, 1, v9", [10], [2, 9])
    a.valu("v_lshlrev_b32 v10, 17, v10", [10], [10])
    a.valu("v_lshl_add_u32 v11, v5, 4, v4", [11], [5, 4])
    a.valu(f"v_lshl_add_u32 v{VO}, v11, 4, v10", [VO], [11, 10])
    read_X(0)
    jobs = []
    for ks in range(40):
        s_ = ks // 2; sp2 = ks % 2; c = ks // 4; sp = ks % 4
        for t in range(4):
            def rd(buf, tag, s_=s_, sp2=sp2, t=t):
                if NOMMA: return
                for u in range(2):
                    d = FB + 4*buf + 2*u
                    a.ds_read(f"ds_read_b64_tr_b16 {vr(d,2)}, v{WA+2*t+u} offset:{(s_%NW)*8192+sp2*4096}", [d, d+1], [WA+2*t+u], tag=tag)
            def mm(buf, ks=ks, t=t, c=c, sp=sp):
                if NOMMA: return
                a.mfma('32', OA+16*t, FB+4*buf, XF+16*(c % 2)+4*sp, None if ks == 0 else OA+16*t)
            jobs.append((rd, mm))
    def hook(j):
        if j % 8 == 0:
            s_ = j // 8
            if not E("NOWAIT", 0): a.wait_vm(('W', s_))
            if not E("NOBAR", 0): a.barrier()
            if s_ >= 2 and s_ + NW - 2 < 20: issue_W(s_ + NW - 2)
            if RPF and not QONLY and s_ % 4 == 2 and s_ // 4 < RPF:
                pt = s_ // 4 + 1
                kind, j = seq[pt]
                srd = "s[20:23]" if kind == 'K' else "s[96:99]"
                a.salu(f"s_add_u32 s29, s92, {j*16384}")
                for jj in range(4):
                    d = quads[4*(pt-1) + jj]
                    a.vmem_load(f"buffer_load_dwordx4 {vr(d,4)}, v{VKV+jj}, {srd}, s29 offen offset:{jj*1024}{KVNT}", range(d, d+4), [VKV+jj], tag=('RP', pt))
            if not RPF:
                if s_ == 17 and not QONLY: issue_KV(1)
                if s_ == 19 and not QONLY:
                    issue_KV(2)
                    if AHEAD >= 3: issue_KV(3)
            if s_ in (0, 10): st(40 + s_ // 10)
        if j % 16 == 4 and j >= 16:
            c = j // 16
            if c + 2 < 10: issue_X(c + 2)
        if j == 4: issue_X(2)
        if j % 16 == 11:
            c = j // 16
            if c + 1 < 10: read_X(c + 1)
    a.wait_lg(('xf', 0))
    merge(a, jobs, [], 4, NB, hook=hook)
    if RPF and not QONLY:
        a.valu("v_lshlrev_b32 v10, 4, v1", [10], [1])
        a.valu("v_add_u32 v10, s92, v10", [10], [10])
        a.barrier()
        for pt in range(1, RPF + 1):
            a.wait_vm(('RP', pt))
            for jj in range(4):
                d = quads[4*(pt-1) + jj]
                a.ds_write(f"ds_write_b128 v10, {vr(d,4)} offset:{PERM[pt]*SLOT + jj*1024}", [10] + list(range(d, d+4)))
            if pt % 2 == 0: a.wait_lg_all()
        a.wait_lg_all()
        for pt in range(RPF + 1, AHEAD + 1): issue_KV(pt)
    for s_ in range(8):
        t = s_ >> 1
        for ii in range(4):
            r = OA + 16*t + 8*(s_ & 1) + 2*ii
            a.valu(f"v_cvt_pk_bf16_f32 v{QF+4*s_+ii}, v{r}, v{r+1}", [QF+4*s_+ii], [r, r+1])
    st.vt = 14
    a.salu(f"s_mov_b32 s30, 0x{f32bits(CSCALE):08x}")
    a.salu("s_lshl_b32 s29, s38, 20")
    srd_from(a, 4, "s72", "s73", "s29", 1 << 20, OWS_OFF)
    a.valu("v_lshrrev_b32 v10, 1, v8", [10], [8])
    a.valu("v_lshl_or_b32 v10, v9, 1, v10", [10], [9, 10])
    a.valu("v_and_b32 v11, 1, v8", [11], [8])
    for u in range(2):
        a.valu(f"v_or_b32 v12, {2*u}, v5", [12], [5])
        a.valu("v_xor_b32 v13, v10, v12", [13], [10, 12])
        a.valu("v_lshlrev_b32 v13, 4, v13", [13], [13])
        a.valu("v_lshl_add_u32 v13, v11, 3, v13", [13], [11, 13])
        a.valu("v_lshl_add_u32 v14, v12, 2, v7", [14], [12, 7])
        a.valu("v_lshl_add_u32 v13, v14, 8, v13", [13], [14, 13])
        a.valu("v_lshl_add_u32 v13, v7, 6, v13", [13], [7, 13])
        for t in range(4):
            a.valu(f"v_xor_b32 v{VA+2*t+u}, {t*64}, v13", [VA+2*t+u], [13])
    st(1)
    if QONLY: a.salu("s_endpgm")

    base = {'K': 0, 'V': 0}
    def rebase(which, slot):
        regs = range(KA, KA+8) if which == 'K' else range(VA, VA+8)
        need = base[which]
        if slot == 4: need = SLOT
        if slot == 0: need = 0
        if need != base[which]:
            for r in regs:
                if need > base[which]:
                    a.valu(f"v_add_u32 v{r}, {need-base[which]}, v{r}", [r], [r])
                else:
                    a.valu(f"v_subrev_u32 v{r}, {base[which]-need}, v{r}", [r], [r])
            base[which] = need
        return slot * SLOT - base[which]
    def V(text, dst, src, **kw):
        return lambda: a.valu(text, dst, src, **kw)
    def part1(j):
        SS = SB[j % 2]; T = j
        o = []
        if E("NOVALU", 0): return o
        for c_, tr in ((0, T0), (16, T1)):
            o.append(V(f"v_max3_f32 v{tr}, v{SS+c_}, v{SS+c_+1}, v{SS+c_+2}", [tr], [SS+c_, SS+c_+1, SS+c_+2]))
        for k in range(3, 15, 2):
            for c_, tr in ((0, T0), (16, T1)):
                o.append(V(f"v_max3_f32 v{tr}, v{tr}, v{SS+c_+k}, v{SS+c_+k+1}", [tr], [tr, SS+c_+k, SS+c_+k+1]))
        o.append(V(f"v_max3_f32 v{T0}, v{T0}, v{T1}, v{SS+15}", [T0], [T0, T1, SS+15]))
        o.append(V(f"v_max_f32 v{T0}, v{T0}, v{SS+31}", [T0], [T0, SS+31]))
        o.append(V(f"v_mov_b32 v{T1}, v{T0}", [T1], [T0]))
        o.append(V(f"v_permlane32_swap_b32 v{T0}, v{T1}", [T0, T1], [T0, T1], kind='permlane'))
        if T == 0:
            o.append(V(f"v_max_f32 v{M}, v{T0}, v{T1}", [M], [T0, T1]))
        else:
            o.append(V(f"v_max3_f32 v{T2}, v{T0}, v{T1}, v{M}", [T2], [T0, T1, M]))
            o.append(V(f"v_sub_f32 v{T3}, v{M}, v{T2}", [T3], [M, T2]))
            o.append(V(f"v_mul_f32 v{T3}, s30, v{T3}", [T3], [T3]))
            o.append(V(f"v_exp_f32 v{AL}, v{T3}", [AL], [T3], trans=True))
            o.append(V(f"v_mov_b32 v{M}, v{T2}", [M], [T2]))
        o.append(V(f"v_mul_f32 v{MC}, s30, v{M}", [MC], [M]))
        for i in range(32 if not E("NOFMA", 0) else 0):
            o.append(V(f"v_fma_f32 v{SS+i}, v{SS+i}, s30, -v{MC}", [SS+i], [SS+i, MC]))
        return o
    def part2(j):
        SS = SB[j % 2]; T = j
        o = []; resc = []
        if E("NOVALU", 0): return o
        if T > 0 and not E("NORESC", 0):
            for i in range(0, 64, 2):
                resc.append(V(f"v_pk_mul_f32 {vr(OA+i,2)}, {vr(OA+i,2)}, {vr(AL,2)} op_sel_hi:[1,0]", [OA+i, OA+i+1], [OA+i, OA+i+1, AL]))
        for i in range(32):
            if not E("NOEXP", 0): o.append(V(f"v_exp_f32 v{SS+i}, v{SS+i}", [SS+i], [SS+i], trans=True))
            if resc: o.append(resc.pop(0))
        for c_, tr in ((0, T0), (8, T1), (16, T2), (24, T3)):
            o.append(V(f"v_add_f32 v{tr}, v{SS+c_}, v{SS+c_+1}", [tr], [SS+c_, SS+c_+1]))
        for k in range(2, 8):
            for c_, tr in ((0, T0), (8, T1), (16, T2), (24, T3)):
                o.append(V(f"v_add_f32 v{tr}, v{tr}, v{SS+c_+k}", [tr], [tr, SS+c_+k]))
        o.append(V(f"v_add_f32 v{T0}, v{T0}, v{T1}", [T0], [T0, T1]))
        o.append(V(f"v_add_f32 v{T2}, v{T2}, v{T3}", [T2], [T2, T3]))
        if T == 0:
            o.append(V(f"v_add_f32 v{L}, v{T0}, v{T2}", [L], [T0, T2]))
        else:
            o.append(V(f"v_add_f32 v{T0}, v{T0}, v{T2}", [T0], [T0, T2]))
            o.append(V(f"v_fma_f32 v{L}, v{L}, v{AL}, v{T0}", [L], [L, AL, T0]))
        for i in range(16):
            o.append(V(f"v_cvt_pk_bf16_f32 v{SS+i}, v{SS+2*i}, v{SS+2*i+1}", [SS+i], [SS+2*i, SS+2*i+1]))
        return o

    if E("CONT", 0):
        assert AHEAD <= 3
        alljobs = []; hooks = {}; after = {}
        pre = {}
        offs = {}
        for p in range(NP):
            kind, j = seq[p]
            j0 = len(alljobs)
            def hk(p=p, kind=kind):
                offs[p] = rebase(kind, PERM[p % 5])
                a.wait_vm(('KV', p))
                a.barrier()
                if p >= 1 and p + AHEAD < NP and p + AHEAD > 3: issue_KV(p + AHEAD)
                st(3 + p)
            hooks[j0] = hk
            if kind == 'K':
                SS = SB[j % 2]
                for kt in range(2):
                    for s_ in range(8):
                        def rd(buf, tag, kt=kt, s_=s_, p=p):
                            d = FB + 4*buf
                            a.ds_read(f"ds_read_b128 {vr(d,4)}, v{KA+s_} offset:{offs[p]+kt*8192}", range(d, d+4), [KA+s_], tag=tag)
                        def mm(buf, kt=kt, s_=s_, SS=SS):
                            a.mfma('32', SS+16*kt, FB+4*buf, QF+4*s_, None if s_ == 0 else SS+16*kt)
                        alljobs.append((rd, mm))
                vl = part2(j - 1) if j > 0 else []
                tailv = part1(0) if j == 0 else []
            else:
                PP = SB[j % 2]
                for jq in range(4):
                    for t in range(4):
                        def rd(buf, tag, jq=jq, t=t, p=p):
                            for u in range(2):
                                d = FB + 4*buf + 2*u
                                a.ds_read(f"ds_read_b64_tr_b16 {vr(d,2)}, v{VA+2*t+u} offset:{offs[p]+jq*4096}", [d, d+1], [VA+2*t+u], tag=tag)
                        def mm(buf, jq=jq, t=t, j=j, PP=PP):
                            first = (j == 0 and jq == 0)
                            a.mfma('32', OA+16*t, FB+4*buf, PP+4*jq, None if first else OA+16*t)
                        alljobs.append((rd, mm))
                vl = part1(j + 1) if j < 7 else []
                tailv = []
                if j == 7: pre[j0] = part2(7)
            vi = 0
            for i in range(16):
                k = -(-(len(vl) - vi) // (16 - i))
                after[j0 + i] = vl[vi:vi + k]; vi += k
            after[j0 + 15] = after[j0 + 15] + tailv
        PD = 4; n = len(alljobs)
        for i in range(-PD, n):
            if i + PD < n:
                if i + PD in hooks: hooks[i + PD]()
                alljobs[i + PD][0]((i + PD) % NB, ('job', i + PD))
            if i >= 0:
                for f in pre.get(i, []): f()
                a.wait_lg(('job', i))
                alljobs[i][1](i % NB)
                for f in after[i]: f()
    else:
        for p in range(NP):
            kind, j = seq[p]
            slot = PERM[p % 5]
            off = rebase(kind, slot)
            a.wait_vm(('KV', p))
            a.barrier()
            if p == 0 and AHEAD >= 4 and not RPF: issue_KV(4)
            if p >= 1 and p + AHEAD < NP and p + AHEAD > RPF: issue_KV(p + AHEAD)
            st(3 + p)
            jobs = []
            if NOMMA: continue
            if kind == 'K':
                SS = SB[j % 2]
                for kt in range(2):
                    for s_ in range(8):
                        def rd(buf, tag, kt=kt, s_=s_):
                            d = FB + 4*buf
                            a.ds_read(f"ds_read_b128 {vr(d,4)}, v{KA+s_} offset:{off+kt*8192}", range(d, d+4), [KA+s_], tag=tag)
                        def mm(buf, kt=kt, s_=s_, SS=SS):
                            a.mfma('32', SS+16*kt, FB+4*buf, QF+4*s_, None if s_ == 0 else SS+16*kt)
                        jobs.append((rd, mm))
                merge(a, jobs, part2(j - 1) if j > 0 else [], 5, NB, lead=8)
                if j == 0:
                    for f in part1(0): f()
            else:
                if j == 7:
                    for f in part2(7): f()
                PP = SB[j % 2]
                for jq in range(4):
                    for t in range(4):
                        def rd(buf, tag, jq=jq, t=t):
                            for u in range(2):
                                d = FB + 4*buf + 2*u
                                a.ds_read(f"ds_read_b64_tr_b16 {vr(d,2)}, v{VA+2*t+u} offset:{off+jq*4096}", [d, d+1], [VA+2*t+u], tag=tag)
                        def mm(buf, jq=jq, t=t, j=j, PP=PP):
                            first = (j == 0 and jq == 0)
                            a.mfma('32', OA+16*t, FB+4*buf, PP+4*jq, None if first else OA+16*t)
                        jobs.append((rd, mm))
                merge(a, jobs, part1(j + 1) if j < 7 else [], 4, NB, lead=6)
    TMPO = SB[1]
    a.valu(f"v_mov_b32 v{T0}, v{L}", [T0], [L])
    a.valu(f"v_mov_b32 v{T1}, v{L}", [T1], [L])
    a.valu(f"v_permlane32_swap_b32 v{T0}, v{T1}", [T0, T1], [T0, T1], kind='permlane')
    a.valu(f"v_add_f32 v{T0}, v{T0}, v{T1}", [T0], [T0, T1])
    a.valu(f"v_rcp_f32 v{AL}, v{T0}", [AL], [T0], trans=True)
    a.salu("s_lshl_b32 s29, s37, 12")
    for t in range(4):
        for i in range(0, 16, 2):
            r = OA + 16*t + i
            a.valu(f"v_pk_mul_f32 {vr(r,2)}, {vr(r,2)}, {vr(AL,2)} op_sel_hi:[1,0]", [r, r+1], [r, r+1, AL])
        for piece in range(2):
            d = TMPO + 8*t + 4*piece
            for k, rr in enumerate((4*piece, 4*piece+2, 8+4*piece, 8+4*piece+2)):
                r = OA + 16*t + rr
                a.valu(f"v_cvt_pk_bf16_f32 v{d+k}, v{r}, v{r+1}", [d+k], [r, r+1])
            a.vmem_store(f"buffer_store_dwordx4 {vr(d,4)}, v{VO}, s[4:7], s29 offen offset:{t*1024+piece*512} {OST}", [VO], range(d, d+4), tag='O')
    st(35)
    if PACKAT == 2: do_pack(True)
    a.label("attn_done")
    a.salu("s_endpgm")

def gen_oproj(a):
    ACC, RING = 16, 96
    VL16, VL16B, VOF, VST = 246, 247, 248, 252
    D = 4; NK = 16
    a.label("oproj_kernel")
    a.salu("s_cmp_ge_u32 s2, 256")
    a.salu("s_cbranch_scc1 oproj_done")
    kernargs(a)
    a.salu("s_and_b32 s31, s2, 7")
    a.salu("s_lshr_b32 s32, s2, 3")
    a.salu("s_lshr_b32 s33, s31, 2")
    a.salu("s_bfe_u32 s34, s31, 0x10001")
    a.salu("s_and_b32 s35, s31, 1")
    a.salu("s_and_b32 s36, s32, 7")
    a.salu("s_lshl_b32 s34, s34, 3")
    a.salu("s_add_u32 s34, s34, s36")
    a.salu("s_lshr_b32 s36, s32, 3")
    a.salu("s_lshl_b32 s35, s35, 2")
    a.salu("s_add_u32 s35, s35, s36")
    a.salu("s_lshl_b32 s38, s33, 3"); a.salu("s_add_u32 s38, s38, s35")
    lane_consts(a)
    a.valu(f"v_lshlrev_b32 v{VL16}, 4, v1", [VL16], [1])
    a.valu(f"v_add_u32 v{VL16B}, 0x1000, v{VL16}", [VL16B], [VL16])
    for qt in range(4):
        a.valu(f"v_add_u32 v{VOF+qt}, {qt*131072}, v{VL16}", [VOF+qt], [VL16])
    a.salu("s_waitcnt lgkmcnt(0)")
    if E("RAWWO", 0):
        VWO, TA = 240, 245
        BF, AF = 96, 160
        a.salu("s_cmp_eq_u32 s33, 1")
        a.salu("s_cselect_b64 s[74:75], s[66:67], s[56:57]")
        a.salu("s_mul_i32 s29, s35, 160")
        a.salu("s_sub_u32 s30, 5242880, s29")
        srd_from(a, 12, "s74", "s75", "s29", "s30")
        a.salu("s_lshl_b32 s29, s33, 4"); a.salu("s_add_u32 s29, s29, s34"); a.salu("s_lshl_b32 s29, s29, 19")
        srd_from(a, 16, "s72", "s73", "s29", 524288, OWS_OFF)
        a.salu("s_mov_b32 s30, 0x1999999a")
        for jj in range(5):
            a.valu(f"v_add_u32 v10, {64*jj}, v1", [10], [1])
            a.valu("v_mul_hi_u32 v11, v10, s30", [11], [10])
            a.valu("v_mul_u32_u24 v12, 10, v11", [12], [11])
            a.valu("v_sub_u32 v12, v10, v12", [12], [10, 12])
            a.valu("v_mul_u32_u24 v11, 0x500, v11", [11], [11])
            a.valu(f"v_lshl_add_u32 v{VWO+jj}, v12, 4, v11", [VWO+jj], [12, 11])
            if 0 < jj < 4:
                a.valu(f"v_subrev_u32 v{VWO+jj}, {1024*jj}, v{VWO+jj}", [VWO+jj], [VWO+jj])
        a.salu("s_mul_i32 s76, s24, 20480")
        a.valu("v_lshl_add_u32 v10, v3, 2, v7", [10], [3, 7])
        a.valu("v_mul_u32_u24 v10, 160, v10", [10], [10])
        a.valu("v_lshl_add_u32 v10, v8, 3, v10", [10], [8, 10])
        a.valu(f"v_add_u32 v{TA}, s76, v10", [TA], [10])
        a.salu("s_lshl_b32 s26, s24, 4")
        a.salu("s_mul_i32 s27, s26, 40960")
        a.salu("s_lshl_b32 s28, s26, 10")
        def issue_A(k):
            slot = k % D
            a.salu(f"s_add_u32 m0, s76, {slot*5120}", m0=True)
            a.salu(f"s_add_u32 s29, s27, {k*40960}")
            for jj in range(4):
                a.vmem_dma(f"buffer_load_dwordx4 v{VWO+jj}, s[12:15], s29 offen offset:{jj*1024} lds", [VWO+jj], tag=('A', k))
            a.salu(f"s_add_u32 m0, s76, {slot*5120+4096}", m0=True)
            a.vmem_dma(f"buffer_load_dwordx4 v{VWO+4}, s[12:15], s29 offen lds", [VWO+4], tag=('A', k))
        def issue_B(k):
            slot = k % D
            a.salu(f"s_add_u32 s30, s28, {k*1024}")
            for qt in range(4):
                d = BF + 16*slot + 4*qt
                a.vmem_load(f"buffer_load_dwordx4 {vr(d,4)}, v{VOF+qt}, s[16:19], s30 offen", range(d, d+4), [VOF+qt], tag=('B', k))
        def read_A(k):
            slot = k % D
            ab = AF + 20 * (k % 2)
            for nt_ in range(5):
                for u in range(2):
                    d = ab + 4*nt_ + 2*u
                    a.ds_read(f"ds_read_b64_tr_b16 {vr(d,2)}, v{TA} offset:{slot*5120+u*2560+nt_*32}", [d, d+1], [TA], tag=('Af', k, nt_))
        for k in range(D - 1): issue_A(k); issue_B(k)
        a.salu("s_mul_i32 s29, s34, 163840")
        a.salu("s_mul_i32 s30, s33, 1280"); a.salu("s_add_u32 s29, s29, s30")
        a.salu("s_mul_i32 s30, s35, 160"); a.salu("s_add_u32 s29, s29, s30")
        a.salu("s_sub_u32 s30, 2621440, s29")
        srd_from(a, 20, "s68", "s69", "s29", "s30")
        st = Stamper(a, 14, 15, wshift=3)
        st.setup()
        a.wait_vm(('A', 0))
        read_A(0)
        for k in range(NK):
            slot = k % D
            ab = AF + 20 * (k % 2)
            if k + D - 1 < NK:
                issue_A(k + D - 1); issue_B(k + D - 1)
            a.wait_vm(('B', k))
            for nt_ in range(5):
                a.wait_lg(('Af', k, nt_))
                for qt in range(4):
                    d = ACC + 4*(nt_*4 + qt)
                    a.mfma('16', d, ab + 4*nt_, BF + 16*slot + 4*qt, None if k == 0 else d)
                if nt_ == 2 and k + 1 < NK:
                    a.wait_vm(('A', k + 1))
                    read_A(k + 1)
    else:
        a.salu("s_mul_i32 s29, s38, 655360")
        srd_from(a, 12, "s72", "s73", "s29", 655360, WOP_OFF)
        a.salu("s_lshl_b32 s29, s33, 4"); a.salu("s_add_u32 s29, s29, s34"); a.salu("s_lshl_b32 s29, s29, 19")
        srd_from(a, 16, "s72", "s73", "s29", 524288, OWS_OFF)
        a.salu("s_lshl_b32 s26, s24, 4")
        a.salu("s_mul_i32 s27, s26, 5120")
        a.salu("s_lshl_b32 s28, s26, 10")
        def issue(k):
            slot = k % D
            a.salu(f"s_add_u32 s29, s27, {k*5120}")
            a.salu(f"s_add_u32 s30, s28, {k*1024}")
            for nt_ in range(5):
                d = RING + 36*slot + 4*nt_
                if nt_ < 4:
                    a.vmem_load(f"buffer_load_dwordx4 {vr(d,4)}, v{VL16}, s[12:15], s29 offen offset:{nt_*1024}", range(d, d+4), [VL16], tag=('k', k))
                else:
                    a.vmem_load(f"buffer_load_dwordx4 {vr(d,4)}, v{VL16B}, s[12:15], s29 offen", range(d, d+4), [VL16B], tag=('k', k))
            for qt in range(4):
                d = RING + 36*slot + 20 + 4*qt
                a.vmem_load(f"buffer_load_dwordx4 {vr(d,4)}, v{VOF+qt}, s[16:19], s30 offen", range(d, d+4), [VOF+qt], tag=('k', k))
        for k in range(D): issue(k)
        a.salu("s_mul_i32 s29, s34, 163840")
        a.salu("s_mul_i32 s30, s33, 1280"); a.salu("s_add_u32 s29, s29, s30")
        a.salu("s_mul_i32 s30, s35, 160"); a.salu("s_add_u32 s29, s29, s30")
        a.salu("s_sub_u32 s30, 2621440, s29")
        srd_from(a, 20, "s68", "s69", "s29", "s30")
        st = Stamper(a, 14, 15, wshift=3)
        st.setup()
        st(0)
        for k in range(NK):
            slot = k % D
            a.wait_vm(('k', k))
            for nt_ in range(5):
                for qt in range(4):
                    d = ACC + 4*(nt_*4 + qt)
                    a.mfma('16', d, RING + 36*slot + 4*nt_, RING + 36*slot + 20 + 4*qt, None if k == 0 else d)
            if k + D < NK: issue(k + D)
            if k in (0, 7): st(1 + k // 7)
    st(3)
    a.salu("s_mul_i32 s27, s24, 20480")
    a.valu(f"v_add_u32 v11, s27, v{VL16}", [11], [VL16])
    for tile in range(20):
        d = ACC + 4*tile
        a.ds_write(f"ds_write_b128 v11, {vr(d,4)} offset:{tile*1024}", [11] + list(range(d, d+4)))
        if len(a.lgq) >= 12: a.wait_lg_all()
    a.wait_lg_all()
    a.barrier()
    a.salu("s_lshl_b32 s29, s24, 10")
    for g in range(3):
        a.valu(f"v_add_u32 v{10+g}, s29, v{VL16}", [10+g], [VL16])
        if g: a.valu(f"v_add_u32 v{10+g}, {g*61440}, v{10+g}", [10+g], [10+g])
    a.valu("v_and_b32 v13, 3, v2", [13], [2])
    a.valu("v_lshl_add_u32 v13, v13, 4, v4", [13], [13, 4])
    a.valu("v_mul_u32_u24 v13, 0xa00, v13", [13], [13])
    a.valu("v_lshl_add_u32 v13, v3, 3, v13", [13], [3, 13])
    a.valu("v_lshrrev_b32 v14, 2, v2", [14], [2])
    a.valu(f"v_lshl_add_u32 v{VST}, v14, 5, v13", [VST], [14, 13])
    lskip = a.newlabel("RS")
    for i in range(3):
        if i == 2:
            a.salu("s_cmp_ge_u32 s24, 4")
            a.salu(f"s_cbranch_scc1 {lskip}")
        for src in range(8):
            d = RING + 32*i + 4*src
            ar = 10 + src // 3
            a.ds_read(f"ds_read_b128 {vr(d,4)}, v{ar} offset:{(src%3)*20480 + i*8192}", range(d, d+4), [ar], tag=('R', i))
        a.wait_lg_all()
        d = RING + 32*i
        for step in (4, 2, 1):
            for q in range(step):
                for k in range(4):
                    x, y = d + 4*q + k, d + 4*(q+step) + k
                    a.valu(f"v_add_f32 v{x}, v{x}, v{y}", [x], [x, y])
        a.valu(f"v_cvt_pk_bf16_f32 v{d+4}, v{d}, v{d+1}", [d+4], [d, d+1])
        a.valu(f"v_cvt_pk_bf16_f32 v{d+5}, v{d+2}, v{d+3}", [d+5], [d+2, d+3])
        a.vmem_store(f"buffer_store_dwordx2 {vr(d+4,2)}, v{VST}, s[20:23], 0 offen offset:{i*64}", [VST], [d+4, d+5], tag='st')
    a.label(lskip)
    st(4)
    a.label("oproj_done")
    a.salu("s_endpgm")

def kd(name, vgpr):
    return f""".p2align 6
.amdhsa_kernel {name}
  .amdhsa_next_free_vgpr {vgpr}
  .amdhsa_next_free_sgpr 102
  .amdhsa_accum_offset {vgpr}
  .amdhsa_group_segment_fixed_size 0
  .amdhsa_kernarg_size 104
  .amdhsa_user_sgpr_count 2
  .amdhsa_user_sgpr_kernarg_segment_ptr 1
  .amdhsa_system_sgpr_workgroup_id_x 1
.end_amdhsa_kernel
"""

def main(out):
    hdr = """; Generated by gen/gen_v6.py (hand-written generator).
; @launch kernel=attn_kernel grid=(512,1,1) block=(256,1,1) lds=81920
; @launch kernel=oproj_kernel grid=(256,1,1) block=(512,1,1) lds=163840
.amdgcn_target "amdgcn-amd-amdhsa--gfx950"
.text
"""
    body = ""
    for name, g in (("attn_kernel", gen_attn), ("oproj_kernel", gen_oproj)):
        a = Asm()
        g(a)
        body += f".globl {name}\n.p2align 8\n.type {name},@function\n" + a.text()
    tail = '.section .rodata,"a"\n' + kd("attn_kernel", 256) + kd("oproj_kernel", 256)
    open(out, "w").write(hdr + body + tail)

if __name__ == "__main__":
    main(sys.argv[1] if len(sys.argv) > 1 else f"cdna_kernels/{NAME}.s")
```
